```python
import torch

def _softmax(x, axis=-1):
    return torch.softmax(x, dim=axis)
def _gelu(x):
    return torch.nn.functional.gelu(x, approximate="tanh")
def _silu(x):
    return torch.nn.functional.silu(x)
def _sigmoid(x):
    return torch.sigmoid(x)
def _layernorm(x, axis=-1, eps=1e-5):
    m = x.mean(dim=axis, keepdim=True)
    v = x.var(dim=axis, keepdim=True, unbiased=False)
    return (x - m) / torch.sqrt(v + eps)
def _scatter_add(tgt, idx, src, axis=0):
    return tgt.clone().index_add_(axis, idx, src)
def _segment_sum(src, seg, n):
    out = torch.zeros((n,) + src.shape[1:], dtype=src.dtype)
    return out.index_add_(0, seg, src)
def _pad(x, pw):
    flat = tuple(v for pair in reversed(pw) for v in pair)
    return torch.nn.functional.pad(x, flat)

kernel_name = 'recurrent_scan__linear_kernel_hedgehog__glu_gated_geglu__prompt'

def setup_inputs():

    _w = (lambda a: (lambda t: t.to(torch.bfloat16) if t.is_floating_point() else t)(torch.as_tensor(a)))
    def _A_setup():
        B, S, D, H = 1, 2048, 448, 16
        Dh = D // H
        return {
            "x": _w((lambda *s: torch.randn(*s, dtype=torch.bfloat16) * 0.05)(B, S, D)),
            "wqkv": _w((lambda *s: torch.randn(*s, dtype=torch.bfloat16) * 0.8)(D, 3 * D)),
            "w_phi": _w((lambda *s: torch.randn(*s, dtype=torch.bfloat16) * 0.8)(H, Dh, Dh) * (Dh ** -0.5)),
            "wo": _w((lambda *s: torch.randn(*s, dtype=torch.bfloat16) * 0.8)(D, D)),
        }
    _A_in = _A_setup()

    def _B_setup():
        B, S, Dm, Df = 1, 2048, 448, 1792
        return {
            "x": _w((lambda *s: torch.randn(*s, dtype=torch.bfloat16) * 0.05)(B, S, Dm)),
            "w_gate": _w((lambda *s: torch.randn(*s, dtype=torch.bfloat16) * 0.2)(Dm, Df) * (Dm ** -0.5)),
            "w_up": _w((lambda *s: torch.randn(*s, dtype=torch.bfloat16) * 0.2)(Dm, Df) * (Dm ** -0.5)),
            "w_down": _w((lambda *s: torch.randn(*s, dtype=torch.bfloat16) * 0.2)(Df, Dm) * (Df ** -0.5)),
        }
    _B_in = _B_setup()

    return {
        "A_x": _A_in["x"],
        "A_wqkv": _A_in["wqkv"],
        "A_w_phi": _A_in["w_phi"],
        "A_wo": _A_in["wo"],
        "B_x": _B_in["x"],
        "B_w_gate": _B_in["w_gate"],
        "B_w_up": _B_in["w_up"],
        "B_w_down": _B_in["w_down"],
    }

def reference(A_x, A_wqkv, A_w_phi, A_wo, B_x, B_w_gate, B_w_up, B_w_down):
    def _A_ref(x, wqkv, w_phi, wo):
        B, S, D = x.shape
        H = 16; Dh = D // H
        qkv = (lambda x, *d: x.permute(*d))((x @ wqkv).reshape(B, S, 3, H, Dh), 2, 0, 3, 1, 4)
        q, k, v = qkv[0], qkv[1], qkv[2]
        pq = torch.einsum("bhsd,hdf->bhsf", q, w_phi)
        pk = torch.einsum("bhsd,hdf->bhsf", k, w_phi)
        phi_q = torch.concatenate([_softmax(pq, axis=-1), _softmax(-pq, axis=-1)], axis=-1)
        phi_k = torch.concatenate([_softmax(pk, axis=-1), _softmax(-pk, axis=-1)], axis=-1)
        kv = torch.einsum("bhsf,bhsd->bhfd", phi_k, v)
        z  = torch.einsum("bhsf->bhf", phi_k)
        num = torch.einsum("bhqf,bhfd->bhqd", phi_q, kv)
        den = torch.einsum("bhqf,bhf->bhq", phi_q, z)[..., None] + 1e-6
        o = num / den
        return (lambda x, *d: x.permute(*d))(o, 0, 2, 1, 3).reshape(B, S, D) @ wo

    def _B_ref(x, w_gate, w_up, w_down):
        g = torch.einsum("bsd,df->bsf", x, w_gate)
        u = torch.einsum("bsd,df->bsf", x, w_up)
        h = _gelu(g) * u
        return torch.einsum("bsf,fd->bsd", h, w_down)

    x = A_x
    xn = _layernorm(x, axis=-1)
    s = _A_ref(xn, A_wqkv, A_w_phi, A_wo)
    g = _silu(_B_ref(xn, B_w_gate, B_w_up, B_w_down))
    return x + s * g
```

```python
import re

TRANS = ('v_exp_f32', 'v_log_f32', 'v_rcp_f32', 'v_rsq_f32', 'v_sqrt_f32', 'v_sin_f32', 'v_cos_f32')

def _regs(tok):
    tok = tok.strip()
    tok = tok.lstrip('-')
    m = re.fullmatch(r'abs\((.*)\)', tok) or re.fullmatch(r'\|(.*)\|', tok)
    if m: tok = m.group(1)
    m = re.fullmatch(r'([vsa])(\d+)', tok)
    if m: return [(m.group(1), int(m.group(2)))]
    m = re.fullmatch(r'([vsa])\[(\d+):(\d+)\]', tok)
    if m: return [(m.group(1), i) for i in range(int(m.group(2)), int(m.group(3)) + 1)]
    if tok in ('vcc', 'exec', 'm0', 'scc'): return [tok]
    if tok in ('vcc_lo', 'vcc_hi'): return ['vcc']
    if tok in ('exec_lo', 'exec_hi'): return ['exec']
    return []

class I:
    __slots__ = ('text', 'op', 'rd', 'wr', 'kind', 'tag', 'arg', 'ops', 'passes', 'srcc', 'ab', 'cost')
    def __init__(self, text, tag=None):
        self.text = text; self.tag = tag; self.arg = None
        t = text.split(';')[0].strip()
        parts = t.split(None, 1)
        op = parts[0]; self.op = op
        rest = parts[1] if len(parts) > 1 else ''
        ops = []; depth = 0; cur = ''
        for ch in rest:
            if ch in '[(': depth += 1
            if ch in '])': depth -= 1
            if ch == ',' and depth == 0: ops.append(cur.strip()); cur = ''
            else: cur += ch
        if cur.strip(): ops.append(cur.strip())
        mods = ''
        if ops:
            sp = ops[-1].split(None, 1)
            ops[-1] = sp[0]
            if len(sp) > 1: mods = sp[1]
        self.ops = ops
        R = [_regs(o) for o in ops]
        rd = set(); wr = set(); kind = 'other'
        self.passes = 0; self.srcc = (); self.ab = ()
        if op.endswith(':'):
            kind = 'label'
        elif op.startswith('v_mfma'):
            kind = 'mfma'; wr |= set(R[0]); rd |= set(R[1]) | set(R[2]) | set(R[3])
            self.passes = 8 if '32x32' in op else 4
            self.srcc = tuple(R[3]); self.ab = tuple(R[1]) + tuple(R[2])
        elif op.startswith('v_'):
            kind = 'trans' if op.replace('_e32', '').replace('_e64', '') in TRANS else 'valu'
            if op == 'v_nop': pass
            else:
                wr |= set(R[0])
                for r in R[1:]: rd |= set(r)
                if op.startswith(('v_fmac', 'v_dot2c', 'v_pk_fmac')): rd |= set(R[0])
                if op.startswith(('v_permlane32_swap', 'v_permlane16_swap')):
                    rd |= set(R[0]); wr |= set(R[1])
                if op.startswith(('v_add_co', 'v_sub_co', 'v_addc_co', 'v_subb_co', 'v_mad_u64_u32')):
                    wr |= set(R[1]); rd -= set(R[1])
                    if op.startswith(('v_addc', 'v_subb')): rd |= set(R[-1])
                if '_dpp' in op or op.startswith('v_writelane'): rd |= set(R[0])
                if '_sdwa' in op and 'UNUSED_PRESERVE' in mods: rd |= set(R[0])
            rd.add('exec')
        elif op.startswith('ds_'):
            kind = 'ds'
            if op.startswith(('ds_read', 'ds_bpermute', 'ds_permute', 'ds_swizzle')):
                wr |= set(R[0])
                for r in R[1:]: rd |= set(r)
            else:
                for r in R: rd |= set(r)
            rd.add('exec')
        elif op.startswith(('buffer_', 'global_')):
            kind = 'vmem'
            lds = re.search(r'\blds\b', mods) is not None
            if op in ('buffer_wbl2', 'buffer_inv'):
                pass
            elif op.startswith(('buffer_load', 'global_load')) and not lds:
                wr |= set(R[0])
                for r in R[1:]: rd |= set(r)
                if 'd16' in op: rd |= set(R[0])
            elif 'atomic' in op and re.search(r'\bsc0\b', mods):
                wr |= set(R[0])
                for r in R: rd |= set(r)
            else:
                for r in R: rd |= set(r)
                if lds: rd.add('m0')
            rd.add('exec')
        elif op.startswith(('s_load', 's_memtime', 's_memrealtime', 's_buffer_load')):
            kind = 'smem'; wr |= set(R[0])
            for r in R[1:]: rd |= set(r)
        elif op == 's_waitcnt': kind = 'wait'
        elif op == 's_barrier': kind = 'barrier'
        elif op == 's_nop': kind = 'nop'; self.arg = int(ops[0])
        elif op.startswith(('s_cbranch', 's_branch')):
            kind = 'branch'
        elif op in ('s_endpgm', 's_sleep', 's_setprio'): kind = 'salu'
        elif op.startswith('s_'):
            kind = 'salu'
            if op.startswith(('s_cmp', 's_bitcmp')):
                for r in R: rd |= set(r)
            else:
                wr |= set(R[0])
                for r in R[1:]: rd |= set(r)
                if 'saveexec' in op: wr.add('exec'); rd.add('exec')
        self.rd = rd; self.wr = wr; self.kind = kind
        self.cost = {'valu': 1, 'trans': 2, 'mfma': 2}.get(kind, 0)
        if op.startswith(('v_permlane32_swap', 'v_permlane16_swap')): self.cost = 2
    def __repr__(self): return self.text

class P:
    def __init__(self, kind, arg=None):
        self.kind = kind; self.arg = arg; self.cost = 0
    def __repr__(self): return f'<{self.kind} {self.arg}>'

def WAITTAG(*tags): return P('waittag', tags)
def WAITLDS(): return P('waitlds')
def BEGIN(region): return P('begin', region)
def END(region): return P('end', region)
def GAP(n): return P('gap', n)
def SYNC(name): return P('sync', name)
def MARK(name): return P('mark', name)
def NEED(name): return P('need', name)
def DONE(name): return P('done', name)

class Stream(list):
    def __call__(self, text, tag=None):
        for line in text.strip().split('\n'):
            line = line.strip()
            if not line or line.startswith(';'): continue
            self.append(I(line, tag))
        return self
    def p(self, x): self.append(x); return self

def interleave(main, fill, budget):
    out = Stream(); fi = 0; gap = 0; marks = set(); credit = 0.0
    def emit_fill(limit, force_until=None):
        nonlocal fi, gap
        spent = 0
        while fi < len(fill):
            f = fill[fi]
            if isinstance(f, P) and f.kind == 'gap':
                fi += 1
                if force_until is None:
                    gap = f.arg; return spent
                continue
            if isinstance(f, P) and f.kind == 'sync':
                if f.arg not in marks:
                    assert force_until is None, f'need {force_until} blocked by sync {f.arg}'
                    return spent
                fi += 1; continue
            if isinstance(f, P) and f.kind == 'done':
                marks.add('done:' + f.arg); fi += 1
                if force_until == f.arg: return spent
                continue
            if force_until is None and spent + f.cost > limit and f.cost > 0: return spent
            out.append(f); spent += f.cost; fi += 1
        return spent
    for m in main:
        if isinstance(m, P) and m.kind == 'mark':
            marks.add(m.arg); continue
        if isinstance(m, P) and m.kind == 'need':
            if 'done:' + m.arg not in marks:
                emit_fill(0, force_until=m.arg); gap = 0
            continue
        out.append(m)
        if isinstance(m, I) and m.kind == 'mfma':
            if gap > 0: gap -= 1; credit = 0.0; continue
            credit += budget
            credit -= emit_fill(credit)
            credit = min(credit, 2.0)
    while fi < len(fill):
        f = fill[fi]
        if isinstance(f, P) and f.kind in ('gap', 'sync', 'done'):
            if f.kind == 'sync': assert f.arg in marks, f.arg
            fi += 1; continue
        out.append(f); fi += 1
    return out

class _E:
    __slots__ = ('dst', 'tag', 'region')
    def __init__(self, dst, tag, region): self.dst = dst; self.tag = tag; self.region = region

def insert_waits(code):
    out = Stream()
    vm = []; lg = []; region = None; saved = None
    smem_pending = False
    def count_younger(q, idx):
        return sum(1 for e in q[idx + 1:] if e.region is None or e.region == region)
    def do_wait(vi, li):
        nonlocal vm, lg
        parts = []
        if vi is not None:
            n = min(count_younger(vm, vi), 63); parts.append(f'vmcnt({n})'); vm = vm[vi + 1:]
        if li is not None:
            n = min(count_younger(lg, li), 15); parts.append(f'lgkmcnt({n})'); lg = lg[li + 1:]
        if parts: out.append(I('s_waitcnt ' + ' '.join(parts)))
    for ins in code:
        if isinstance(ins, P):
            if ins.kind == 'waittag':
                vi = max([i for i, e in enumerate(vm) if e.tag in ins.arg], default=None)
                li = max([i for i, e in enumerate(lg) if e.tag in ins.arg], default=None)
                do_wait(vi, li)
            elif ins.kind == 'waitlds':
                if lg: do_wait(None, len(lg) - 1)
            elif ins.kind == 'begin':
                assert region is None; region = ins.arg; saved = (list(vm), list(lg)); out.append(ins)
            elif ins.kind == 'end':
                def merge(pre, now):
                    keep = [e for e in pre if not (e.region == region and e not in now)]
                    return keep + [e for e in now if e not in pre]
                vm = merge(saved[0], vm); lg = merge(saved[1], lg); region = None; out.append(ins)
            else:
                raise ValueError(ins)
            continue
        if ins.kind == 'wait':
            m = re.search(r'vmcnt\((\d+)\)', ins.text)
            if m and int(m.group(1)) == 0: vm = []
            m = re.search(r'lgkmcnt\((\d+)\)', ins.text)
            if m and int(m.group(1)) == 0: lg = []; smem_pending = False
            out.append(ins); continue
        touch = ins.rd | ins.wr
        vi = max([i for i, e in enumerate(vm) if e.dst & touch], default=None)
        li = max([i for i, e in enumerate(lg) if e.dst & touch], default=None)
        if ins.kind == 'vmem' and 'd16' in ins.op and vi is not None and not (vm[vi].dst & (ins.rd - ins.wr)):
            vi = None
        if li is not None and smem_pending:
            out.append(I('s_waitcnt lgkmcnt(0)')); lg = []; smem_pending = False; li = None
        do_wait(vi, li)
        out.append(ins)
        if ins.kind == 'vmem': vm.append(_E(set(ins.wr), ins.tag, region))
        elif ins.kind == 'ds': lg.append(_E(set(ins.wr), ins.tag, region))
        elif ins.kind == 'smem': lg.append(_E(set(ins.wr), ins.tag, region)); smem_pending = True
    return out

def _need(p, c):
    n = 0
    pv = p.kind in ('valu', 'trans')
    cv = c.kind in ('valu', 'trans')
    vw = {r for r in p.wr if isinstance(r, tuple) and r[0] in 'va'}
    sw = {r for r in p.wr if (isinstance(r, tuple) and r[0] == 's') or r == 'vcc'}
    if pv:
        if c.kind == 'mfma' and vw & c.rd: n = max(n, 2)
        if p.kind == 'trans' and c.kind in ('valu', 'mfma') and vw & c.rd: n = max(n, 1)
        if p.kind == 'trans' and c.kind == 'trans' and vw & c.rd: n = max(n, 1)
        if cv and (c.op.startswith('v_permlane') or '_dpp' in c.op) and vw & c.rd: n = max(n, 2)
        if cv and c.op.startswith(('v_readlane', 'v_readfirstlane')) and vw & c.rd: n = max(n, 1)
        if cv and sw & c.rd: n = max(n, 4 if c.op.startswith(('v_readlane', 'v_writelane')) else 2)
        if c.kind == 'vmem' and sw & c.rd: n = max(n, 5)
        if c.kind == 'salu' and sw & c.rd: n = max(n, 1)
        if '_sdwa' in p.op and cv and vw & (c.rd | c.wr): n = max(n, 1)
        if p.op.startswith('v_dot') and not (c.op == p.op) and vw & (c.rd | c.wr): n = max(n, 3)
        if p.op.startswith('v_dot') and c.op == p.op and vw & (c.rd - c.wr): n = max(n, 3)
        if 'exec' in p.wr: n = max(n, 5)
    if p.kind == 'mfma':
        big = 12 if p.passes == 8 else 8
        if c.kind == 'mfma':
            if vw & set(c.ab): n = max(n, big)
            if vw & set(c.srcc):
                if not (set(c.srcc) == vw and c.passes == p.passes): n = max(n, big - 2)
            elif vw & c.wr: n = max(n, big)
        elif c.kind in ('valu', 'trans', 'vmem', 'ds'):
            if vw & (c.rd | c.wr): n = max(n, big)
            if set(p.srcc) & c.wr: n = max(n, p.passes - 1)
    if p.kind == 'salu' and 'm0' in p.wr and 'm0' in c.rd and c.kind in ('vmem', 'ds'): n = max(n, 1)
    if p.kind == 'vmem' and re.search(r'store_dwordx[34]', p.op):
        data = set(_regs(p.ops[0] if p.op.startswith('buffer') else p.ops[1]))
        if data & c.wr: n = max(n, 2)
    return n

def insert_nops(code):
    out = Stream(); hist = []
    saved = None
    for ins in code:
        if isinstance(ins, P):
            if ins.kind == 'begin': saved = [[a, b] for a, b in hist]
            elif ins.kind == 'end':
                d = {id(a): [a, b] for a, b in hist}
                for a, b in saved:
                    if id(a) in d: d[id(a)][1] = min(d[id(a)][1], b)
                    else: d[id(a)] = [a, b]
                hist = list(d.values())
            continue
        if ins.kind == 'label': out.append(ins); continue
        lack = max([_need(p, ins) - age for p, age in hist], default=0)
        if lack > 0:
            out.append(I(f's_nop {lack - 1}'))
            for h in hist: h[1] += lack
        out.append(ins)
        step = ins.arg + 1 if ins.kind == 'nop' else 1
        for h in hist: h[1] += step
        hist = [h for h in hist if h[1] < 20]
        hist.append([ins, 0])
    return out

def finish(code):
    code = insert_nops(insert_waits(code))
    lines = []
    for ins in code:
        lines.append(ins.text if ins.kind == 'label' else '    ' + ins.text)
    return '\n'.join(lines)

def kernel(name, body, vgpr=256, sgpr=102):
    accum = min(256, (vgpr + 3) // 4 * 4)
    return f'''.globl {name}
.p2align 8
.type {name},@function
{name}:
{body}
.section .rodata,"a"
.p2align 6
.amdhsa_kernel {name}
  .amdhsa_next_free_vgpr {vgpr}
  .amdhsa_next_free_sgpr {sgpr}
  .amdhsa_accum_offset {accum}
  .amdhsa_group_segment_fixed_size 0
  .amdhsa_kernarg_size 88
  .amdhsa_user_sgpr_count 2
  .amdhsa_user_sgpr_kernarg_segment_ptr 1
  .amdhsa_system_sgpr_workgroup_id_x 1
.end_amdhsa_kernel
.text
'''
```

```python
from asmlib import *
import struct, math

def f2u(x): return struct.unpack('<I', struct.pack('<f', x))[0]
def hx(x): return '0x%08x' % (x & 0xffffffff)
LOG2E = 1.4426950408889634
GK0 = -2.0 * math.sqrt(2.0 / math.pi) * LOG2E
GK1 = GK0 * 0.044715

HB = 0
EB = 0xA00000
KP = 0xE00000
KF = 0x1000000
CNT = 0x1010000
WS_END = 0x1012000
OOB = 0x7ff00000
ST = 'sc0 sc1'

SX = 28; SW = [[32, 36], [40, 44], [48, 52]]; SWS = 56; SDBG = 60; SPHI = 64
sW, sB, sG, sI, sJ, sT, sROT, sM0 = 68, 69, 70, 71, 72, 73, 74, 75
sKA = 76; sKB = 83; sXO = 90
sH = [97, 98, 99]
sTMP = 26; sTMP2 = 27; sHI = 100
sE = 90; sKPW = 91; sKPR = 92; sKFW = 93
def srd(n): return f's[{n}:{n+3}]'

vL16 = 1; vDA = [2, 3]; vDB = [4, 5]; vPDU = 6; vPX = 7; vC = [8, 9]; vK0 = 10; vXA = 11
vSW = 15; vSA = 16; vSB = 17; vPHI = 18; vT = 26; WF = 56; ACC = [80, 112]; XF = 144
def vr(a, n): return f'v[{a}:{a+n-1}]'

def mk_srd(c, d, plo, off_sgpr, size):
    if off_sgpr is None:
        c(f's_mov_b32 s{d}, s{plo}\ns_mov_b32 s{d+1}, s{plo+1}\ns_mov_b32 s{d+2}, {size}')
    else:
        c(f's_add_u32 s{d}, s{plo}, s{off_sgpr}\ns_addc_u32 s{d+1}, s{plo+1}, 0\ns_sub_u32 s{d+2}, {size}, s{off_sgpr}')
    c(f's_mov_b32 s{d+3}, 0x20000')

def prologue_common(c):
    c(f'''
    s_cmp_ge_u32 s2, 256
    s_cbranch_scc1 K1_EXIT
    s_load_dwordx8 s[4:11], s[0:1], 0
    s_load_dwordx8 s[12:19], s[0:1], 32
    s_load_dwordx4 s[20:23], s[0:1], 64
    s_load_dwordx2 s[24:25], s[0:1], 80
    v_lshrrev_b32 v26, 6, v0
    v_and_b32 v27, 63, v0
    v_readfirstlane_b32 s{sW}, v26
    s_and_b32 s{sTMP}, s2, 7
    s_lshr_b32 s{sTMP2}, s2, 3
    s_lshr_b32 s{sROT}, s{sTMP}, 1
    s_lshr_b32 s{sT}, s{sTMP2}, 3
    s_lshl_b32 s{sI}, s{sROT}, 2
    s_add_u32 s{sI}, s{sI}, s{sT}
    s_lshl_b32 s{sT}, s{sT}, 1
    s_add_u32 s{sROT}, s{sROT}, s{sT}
    s_cmp_ge_u32 s{sROT}, 7
    s_cselect_b32 s{sT}, 7, 0
    s_sub_u32 s{sROT}, s{sROT}, s{sT}
    s_and_b32 s{sJ}, s{sTMP}, 1
    s_lshl_b32 s{sJ}, s{sJ}, 2
    s_and_b32 s{sT}, s{sTMP2}, 3
    s_add_u32 s{sJ}, s{sJ}, s{sT}
    s_bfe_u32 s{sT}, s{sTMP2}, 0x10002
    s_and_b32 s{sB}, s{sW}, 3
    s_lshr_b32 s{sG}, s{sW}, 2
    s_lshl_b32 s{sM0}, s{sW}, 10
    s_mov_b32 s{sHI}, 0
    s_mov_b32 s{sHI+1}, -1
    ''')
    for q in range(7):
        c(f'''
        s_add_u32 s{sTMP}, s{sROT}, {q}
        s_cmp_ge_u32 s{sTMP}, 7
        s_cselect_b32 s{sTMP2}, 7, 0
        s_sub_u32 s{sTMP}, s{sTMP}, s{sTMP2}
        s_lshl_b32 s{sXO+q}, s{sTMP}, 7
        s_mul_i32 s{sKA+q}, s{sTMP}, {64*3584}
        s_mul_i32 s{sKB+q}, s{sTMP}, {64*2688}
        ''')
    c(f'''
    v_lshlrev_b32 v{vL16}, 4, v27
    v_lshrrev_b32 v30, 3, v27
    v_and_b32 v31, 7, v27
    v_lshl_add_u32 v32, v26, 4, v30
    v_mul_u32_u24 v28, 896, v32
    v_lshl_add_u32 v28, v31, 4, v28
    v_add_u32 v29, {8*896}, v28
    s_mul_i32 s{sTMP}, s{sI}, 114688
    s_waitcnt lgkmcnt(0)
    ''')
    mk_srd(c, SX, 4, sTMP, 2048 * 896)
    for g in range(2):
        for q in range(7):
            c(f'buffer_load_dwordx4 {vr(80 + 28*g + 4*q, 4)}, v{28+g}, {srd(SX)}, s{sXO+q} offen')
    c(f'''
    v_lshl_add_u32 v33, v26, 3, v30
    v_bfe_u32 v34, v27, 4, 1
    v_lshlrev_b32 v34, 2, v34
    v_xor_b32 v34, v34, v31
    v_xor_b32 v35, 2, v34
    v_mul_u32_u24 v36, 3584, v33
    v_lshl_add_u32 v{vDA[0]}, v34, 4, v36
    v_lshl_add_u32 v{vDA[1]}, v35, 4, v36
    v_mul_u32_u24 v36, 2688, v33
    v_min_u32 v34, 6, v34
    v_min_u32 v35, 6, v35
    v_lshl_add_u32 v{vDB[0]}, v34, 4, v36
    v_lshl_add_u32 v{vDB[1]}, v35, 4, v36
    ''')
    mk_srd(c, SWS, 24, None, WS_END)
    mk_srd(c, SDBG, 22, None, 256)

def lane_patterns(c, typ):
    c(f'''
    v_lshrrev_b32 v36, 5, v27
    v_bfe_u32 v37, v27, 2, 2
    v_lshl_add_u32 v38, v36, 3, v37
    v_lshlrev_b32 v38, 7, v38
    v_and_b32 v39, 3, v27
    v_lshlrev_b32 v39, 3, v39
    v_bfe_u32 v40, v27, 4, 1
    v_bfe_u32 v41, v27, 3, 1
    v_lshlrev_b32 v41, 6, v41
    v_lshl_add_u32 v42, v40, 5, v39
    s_lshl_b32 s{sTMP}, s{sG}, 6
    v_add_u32 v43, s{sTMP}, v42
    v_xor_b32 v43, v43, v41
    v_add_u32 v{vPDU}, v38, v43
    ''')
    if typ == 'H':
        c(f'''
        s_mul_i32 s{sTMP}, s{sG}, 56
        v_add_u32 v43, s{sTMP}, v42
        v_xor_b32 v43, v43, v41
        v_add_u32 v{vPX}, v38, v43
        ''')
    else:
        c(f'''
        s_and_b32 s{sTMP}, s{sJ}, 1
        s_lshl_b32 s{sTMP}, s{sTMP}, 6
        s_lshl_b32 s{sTMP2}, s{sG}, 5
        s_add_u32 s{sTMP}, s{sTMP}, s{sTMP2}
        v_add_u32 v43, s{sTMP}, v39
        v_xor_b32 v43, v43, v41
        v_lshlrev_b32 v44, 5, v40
        v_xor_b32 v43, v43, v44
        v_lshl_add_u32 v43, v40, 13, v43
        v_add_u32 v{vPX}, v38, v43
        ''')
    c(f'''
    v_and_b32 v44, 31, v27
    s_lshl_b32 s{sTMP}, s{sB}, 5
    v_add_u32 v45, s{sTMP}, v44
    v_bfe_u32 v46, v27, 1, 3
    v_xor_b32 v46, v46, v36
    v_lshlrev_b32 v46, 4, v46
    v_lshl_add_u32 v{vXA}, v45, 7, v46
    v_xor_b32 v{vXA+1}, 32, v{vXA}
    v_xor_b32 v{vXA+2}, 64, v{vXA}
    v_xor_b32 v{vXA+3}, 96, v{vXA}
    v_mov_b32 v{vK0}, {hx(f2u(GK0))}
    ''')
    if typ == 'H':
        c(f'''
        s_mul_i32 s{sTMP}, s{sG}, 29696
        v_mul_u32_u24 v47, 232, v45
        v_lshl_add_u32 v47, v36, 3, v47
        v_add_u32 v{vSW}, s{sTMP}, v47
        v_lshlrev_b32 v47, 4, v40
        v_lshl_add_u32 v47, v37, 2, v47
        v_lshl_add_u32 v47, v36, 1, v47
        v_mul_u32_u24 v47, 232, v47
        v_add_u32 v47, v47, v39
        v_add_u32 v47, s{sTMP}, v47
        s_and_b32 s{sTMP}, s{sB}, 1
        s_lshl_b32 s{sTMP}, s{sTMP}, 6
        v_add_u32 v{vSA}, s{sTMP}, v47
        s_lshr_b32 s{sTMP}, s{sB}, 1
        s_lshl_b32 s{sTMP}, s{sTMP}, 5
        s_add_u32 s{sTMP}, s{sTMP}, 128
        v_add_u32 v{vSB}, s{sTMP}, v47
        ''')

def layernorm(c):
    ONES = 56
    c(f'v_mov_b32 v{ONES}, 0x3f803f80')
    for g in range(2):
        R = 80 + 28 * g
        S0, S1, Q0, Q1 = 57, 58, 59, 60
        c(f'v_mov_b32 v{S0}, 0\nv_mov_b32 v{S1}, 0\nv_mov_b32 v{Q0}, 0\nv_mov_b32 v{Q1}, 0')
        c(f'''
        v_lshrrev_b32 v62, 4, v27
        v_add_u32 v62, {4*g}, v62
        v_xor_b32 v62, v62, v31
        v_lshlrev_b32 v62, 4, v62
        v_lshl_add_u32 v62, v32, 7, v62
        v_add_u32 v62, {8*128*g}, v62
        v_add_u32 v63, 0x10000, v62
        ''')
        for d in range(28):
            c(f'v_dot2c_f32_bf16 v{S0 + (d&1)}, v{R+d}, v{ONES}')
            c(f'v_dot2c_f32_bf16 v{Q0 + (d&1)}, v{R+d}, v{R+d}')
        c(f'v_add_f32 v{S0}, v{S0}, v{S1}\nv_add_f32 v{Q0}, v{Q0}, v{Q1}')
        for dpp in ('quad_perm:[1,0,3,2]', 'quad_perm:[2,3,0,1]', 'row_half_mirror'):
            c(f'v_add_f32_dpp v{S0}, v{S0}, v{S0} {dpp} row_mask:0xf bank_mask:0xf')
            c(f'v_add_f32_dpp v{Q0}, v{Q0}, v{Q0} {dpp} row_mask:0xf bank_mask:0xf')
        inv = hx(f2u(1.0 / 448))
        c(f'''
        v_mul_f32 v{S0}, {inv}, v{S0}
        v_mul_f32 v{Q0}, {inv}, v{Q0}
        v_fma_f32 v{Q0}, -v{S0}, v{S0}, v{Q0}
        v_max_f32 v{Q0}, 0, v{Q0}
        v_cvt_pk_bf16_f32 v{S1}, v{S0}, v{Q0}
        v_and_b32 v{Q0}, 0xffff0000, v{S1}
        v_lshlrev_b32 v{S0}, 16, v{S1}
        v_add_f32 v{Q0}, {hx(f2u(1e-5))}, v{Q0}
        v_cvt_pk_bf16_f32 v{Q0}, v{Q0}, v{Q0}
        v_and_b32 v{Q0}, 0xffff0000, v{Q0}
        v_sqrt_f32 v{Q0}, v{Q0}
        v_cvt_pk_bf16_f32 v{Q0}, v{Q0}, v{Q0}
        v_and_b32 v{Q0}, 0xffff0000, v{Q0}
        v_rcp_f32 v64, v{Q0}
        v_mul_f32 v66, v{S0}, v64
        v_sub_f32 v66, 0, v66
        ''')
        for q in range(7):
            for e in range(4):
                t = 68 + 2 * e
                c(f'v_lshlrev_b32 v{t}, 16, v{R+4*q+e}\nv_and_b32 v{t+1}, 0xffff0000, v{R+4*q+e}')
            for e in range(4):
                t = 68 + 2 * e
                c(f'v_pk_fma_f32 v[{t}:{t+1}], v[{t}:{t+1}], v[64:65], v[66:67] op_sel_hi:[1,0,0]')
            for e in range(4):
                t = 68 + 2 * e
                c(f'v_cvt_pk_bf16_f32 v{R+4*q+e}, v{t}, v{t+1}')
            a, off = (62, q * 16384) if q < 4 else (63, (q - 4) * 16384)
            c(f'ds_write_b128 v{a}, {vr(R+4*q, 4)} offset:{off}')

def gelu_epi(G, U, n, out_regs):
    f = Stream()
    for i0 in range(0, n, 4):
        idx = list(range(i0, i0 + 4)); T = [vT + k for k in range(4)]
        for k, i in enumerate(idx): f(f'v_mul_f32 v{T[k]}, v{G+i}, v{G+i}')
        for k, i in enumerate(idx): f(f'v_fmamk_f32 v{T[k]}, v{T[k]}, {hx(f2u(GK1))}, v{vK0}')
        for k, i in enumerate(idx): f(f'v_mul_f32 v{T[k]}, v{G+i}, v{T[k]}')
        for k, i in enumerate(idx):
            f(f'v_exp_f32 v{T[k]}, v{T[k]}')
            f(f'v_mul_f32 v{U+i}, v{G+i}, v{U+i}')
        for k, i in enumerate(idx): f(f'v_add_f32 v{T[k]}, 1.0, v{T[k]}')
        for k, i in enumerate(idx): f(f'v_rcp_f32 v{T[k]}, v{T[k]}')
        for k, i in enumerate(idx): f(f'v_mul_f32 v{U+i}, v{U+i}, v{T[k]}')
        for k in (0, 2): f(f'v_cvt_pk_bf16_f32 v{out_regs + (i0+k)//2}, v{U+i0+k}, v{U+i0+k+1}')
    return f

def gelu_du(acc, step):
    O = vT + 6
    f = Stream()
    g = gelu_epi(acc, acc + 16, 16, O)
    half = len(g) // 2
    f += g[:half]
    f(f'buffer_store_dwordx4 {vr(O, 4)}, v{vL16}, {srd(SWS)}, s{sH[step]} offen {ST}')
    f += g[half:]
    f(f'buffer_store_dwordx4 {vr(O+4, 4)}, v{vL16}, {srd(SWS)}, s{sH[step]} offen offset:1024 {ST}')
    return f

def gelu_half(acc, step):
    O = vT + 6
    f = gelu_epi(acc, acc + 8, 8, O)
    f(f'buffer_store_dwordx4 {vr(O, 4)}, v{vL16}, {srd(SWS)}, s{sH[step]} offen {ST}')
    return f

def phi_front(f, A, gap):
    B = vT + 6
    for k in range(8): f(f'v_cvt_pk_bf16_f32 v{B+k}, v{A+2*k}, v{A+2*k+1}')
    f(f'v_mfma_f32_32x32x16_bf16 {vr(A,16)}, {vr(vPHI,4)}, {vr(B,4)}, 0')
    f(f'v_mfma_f32_32x32x16_bf16 {vr(A,16)}, {vr(vPHI+4,4)}, {vr(B+4,4)}, {vr(A,16)}')

def phi_exp(f, A, EP):
    MX, MN, T0, T1 = vT, vT + 1, vT + 2, vT + 3
    f(f'v_max3_f32 v{MX}, v{A}, v{A+1}, v{A+2}')
    f(f'v_max3_f32 v{MN}, -v{A}, -v{A+1}, -v{A+2}')
    f(f'v_max3_f32 v{T0}, v{A+3}, v{A+4}, v{A+5}')
    f(f'v_max3_f32 v{T1}, -v{A+3}, -v{A+4}, -v{A+5}')
    for k in (6, 10):
        f(f'v_max3_f32 v{MX}, v{MX}, v{A+k}, v{A+k+1}')
        f(f'v_max3_f32 v{MN}, v{MN}, -v{A+k}, -v{A+k+1}')
        f(f'v_max3_f32 v{T0}, v{T0}, v{A+k+2}, v{A+k+3}')
        f(f'v_max3_f32 v{T1}, v{T1}, -v{A+k+2}, -v{A+k+3}')
    f(f'v_max_f32 v{MX}, v{MX}, v{T0}')
    f(f'v_max_f32 v{MN}, v{MN}, v{T1}')
    f(f'v_permlane32_swap_b32 v{MX}, v{MN}')
    f(f'v_max_f32 v{MX}, v{MX}, v{MN}')
    f(f'v_mul_f32 v{MX}, {hx(f2u(-LOG2E))}, v{MX}')
    f(f'v_mov_b32 v{MN}, v{MX}')
    f(f'v_permlane32_swap_b32 v{MX}, v{MN}')
    for i0 in range(0, 14, 2):
        for i in (i0, i0 + 1):
            f(f'v_fmamk_f32 v{EP+i}, v{A+i}, {hx(f2u(LOG2E))}, v{MX}')
            f(f'v_fmamk_f32 v{A+i}, v{A+i}, {hx(f2u(-LOG2E))}, v{MN}')
        for i in (i0, i0 + 1):
            f(f'v_exp_f32 v{EP+i}, v{EP+i}')
            f(f'v_exp_f32 v{A+i}, v{A+i}')

def kv_epi():
    f = Stream()
    K = ACC[0]; V = ACC[0] + 16
    f.p(GAP(2))
    phi_front(f, K, 0)
    VB = vT + 14
    for k in range(8): f(f'v_cvt_pk_bf16_f32 v{VB+k}, v{V+2*k}, v{V+2*k+1}')
    f(f'v_mov_b32 v{vT}, 0x3f80')
    f(f'v_cndmask_b32 v{VB+6}, v{VB+6}, v{vT}, s[{sHI}:{sHI+1}]')
    f(f'v_cndmask_b32 v{VB+7}, v{VB+7}, 0, s[{sHI}:{sHI+1}]')
    for j in range(4): f(f'ds_write_b64 v{vSW}, {vr(VB+2*j, 2)} offset:{128 + 16*j}', tag='scr')
    f.p(GAP(1))
    EP = V
    phi_exp(f, K, EP)
    S = [vT, vT + 1, vT + 2, vT + 3]
    f(f'v_add_f32 v{S[0]}, v{EP}, v{EP+1}\nv_add_f32 v{S[1]}, v{K}, v{K+1}')
    f(f'v_add_f32 v{S[2]}, v{EP+2}, v{EP+3}\nv_add_f32 v{S[3]}, v{K+2}, v{K+3}')
    for i in range(4, 14, 2):
        f(f'v_add_f32 v{S[0]}, v{S[0]}, v{EP+i}\nv_add_f32 v{S[1]}, v{S[1]}, v{K+i}')
        f(f'v_add_f32 v{S[2]}, v{S[2]}, v{EP+i+1}\nv_add_f32 v{S[3]}, v{S[3]}, v{K+i+1}')
    f(f'v_add_f32 v{S[0]}, v{S[0]}, v{S[2]}\nv_add_f32 v{S[1]}, v{S[1]}, v{S[3]}')
    f(f'v_permlane32_swap_b32 v{S[0]}, v{S[1]}')
    f(f'v_add_f32 v{S[0]}, v{S[0]}, v{S[1]}')
    f(f'v_rcp_f32 v{S[0]}, v{S[0]}')
    f(f'v_mov_b32 v{S[1]}, v{S[0]}')
    f(f'v_permlane32_swap_b32 v{S[0]}, v{S[1]}')
    PB = vT + 6
    for sgn, src in ((0, EP), (1, K)):
        for j in range(4):
            n = 4 if j < 3 else 2
            for i in range(4 * j, 4 * j + n): f(f'v_mul_f32 v{src+i}, v{src+i}, v{S[sgn]}')
            o = PB + 8 * sgn + 2 * j
            f(f'v_cvt_pk_bf16_f32 v{o}, v{src+4*j}, v{src+4*j+1}')
            if j < 3: f(f'v_cvt_pk_bf16_f32 v{o+1}, v{src+4*j+2}, v{src+4*j+3}')
            else: f(f'v_mov_b32 v{o+1}, 0')
            f(f'ds_write_b64 v{vSW}, {vr(o, 2)} offset:{64*sgn + 16*j}', tag='scr')
    f.p(DONE('scr'))
    f.p(SYNC('scrbar'))
    bufs = [K, vT + 6]
    D = V
    def reads(kk):
        b = bufs[kk & 1]
        for rd in range(2):
            f(f'ds_read_b64_tr_b16 {vr(b+2*rd, 2)}, v{vSB} offset:{kk*7424 + rd*232}')
        for mt in range(2):
            for rd in range(2):
                f(f'ds_read_b64_tr_b16 {vr(b+4+4*mt+2*rd, 2)}, v{vSA} offset:{kk*7424 + rd*232 + mt*32}')
    reads(0); f.p(GAP(0)); reads(1); f.p(GAP(1))
    for kk in range(4):
        b = bufs[kk & 1]
        for mt in range(2):
            f(f'v_mfma_f32_16x16x32_bf16 {vr(D+4*mt,4)}, {vr(b+4+4*mt,4)}, {vr(b,4)}, ' + ('0' if kk == 0 else vr(D+4*mt, 4)))
        if kk + 2 < 4: reads(kk + 2)
        f.p(GAP(1))
    for mt in range(2):
        f(f'buffer_store_dwordx4 {vr(D+4*mt,4)}, v{vL16}, {srd(SWS)}, s{sKPW} offen offset:{1024*mt} {ST}', tag='kp')
    f.p(DONE('kp'))
    return f

def dma(c, typ, slab, slot):
    step, q = divmod(slab, 7)
    qkv = typ == 'H' and step != 1
    for part in range(2):
        if typ == 'H' and step == 2 and part == 1: continue
        c(f's_add_u32 m0, s{sM0}, {slot*16384 + part*8192}')
        va = (vDB if qkv else vDA)[part]; so = (sKB if qkv else sKA) + q
        c(f'buffer_load_dwordx4 v{va}, {srd(SW[step][part])}, s{so} offen lds', tag=f'W{slab}')

def main_loop(typ, XRATE=0.75, LOOK=4):
    uses = []
    for step in range(3):
        for q in range(7):
            for t in range(4):
                for part in range(2 if step < 2 else 1):
                    acc = ACC[step & 1] + 16 * part
                    uses.append((7 * step + q, t, part, step, acc, q == 0 and t == 0, 4 * q + t))
    slot_of = {0: 7, 1: 8, 2: 9}
    nxt = 3
    free = []
    reserved = {0, 1, 2, 3} if typ == 'H' else set()
    xread = 0; xfreed = 0; xcredit = 0.0
    steps = [Stream(), Stream(), Stream()]
    state = {'c': steps[0], 'xhi': False}
    def xr(k):
        c = state['c']
        blk = k >> 2
        if blk >= 4 and not state['xhi']:
            for j in range(4): c(f'v_add_u32 v{vXA+j}, 0x10000, v{vXA+j}')
            state['xhi'] = True
        c(f'ds_read_b128 {vr(XF+4*k,4)}, v{vXA+(k&3)} offset:{(blk & 3)*16384}', tag=f'X{blk}')
    def barrier(n):
        nonlocal nxt, xfreed
        c = state['c']
        tags = [f'W{n}']
        nx = xread // 4
        for blk in range(xfreed, nx): tags.append(f'X{blk}')
        if n == 0: c.p(WAITLDS())
        if typ == 'H' and n == SCRBAR: c.p(NEED('scr')); tags.append('scr')
        if typ == 'H' and n == KPBAR: tags.append('kp')
        c.p(WAITTAG(*tags))
        c('s_barrier')
        if typ == 'H' and n == SCRBAR: c.p(MARK('scrbar'))
        if typ == 'H' and n == KPBAR:
            c(f'buffer_atomic_add v{vT+26}, v{vT+27}, {srd(SDBG)}, 0 offen sc1')
        for blk in range(xfreed, nx): free.append(blk)
        xfreed = nx
        if n >= 2: free.append(slot_of[n - 2])
        cnt = 0
        while nxt < 21 and cnt < 3:
            ok = [s for s in free if s not in reserved or nxt <= 5]
            if not ok: break
            ok.sort(key=lambda s: (s not in reserved, s))
            s = ok[0]; free.remove(s); slot_of[nxt] = s
            dma(c, typ, nxt, s); nxt += 1; cnt += 1
    def reads(u):
        slab, t, part, step, acc, first, ks = uses[u]
        c = state['c']
        if t == 0 and part == 0:
            barrier(slab)
            pat = vPDU if (typ == 'F' and step < 2) or (typ == 'H' and step == 1) else vPX
            c(f'v_add_u32 v{vC[0]}, {slot_of[slab]*16384}, v{pat}')
            if step < 2: c(f'v_xor_b32 v{vC[1]}, 32, v{vC[0]}')
        b = WF + 4 * (u % 6)
        for rd in range(2):
            c(f'ds_read_b64_tr_b16 {vr(b+2*rd,2)}, v{vC[part]} offset:{part*8192 + t*2048 + rd*512}')
    for u in range(LOOK):
        reads(u)
        xr(xread); xread += 1
    for u in range(len(uses)):
        slab, t, part, step, acc, first, ks = uses[u]
        state['c'] = steps[step]
        c = state['c']
        if u + LOOK < len(uses): reads(u + LOOK)
        xcredit += XRATE
        while xcredit >= 1 and xread < 28:
            xr(xread); xread += 1; xcredit -= 1
        b = WF + 4 * (u % 6)
        c(f'v_mfma_f32_32x32x16_bf16 {vr(acc,16)}, {vr(b,4)}, {vr(XF+4*ks,4)}, ' + ('0' if first else vr(acc, 16)))
    return steps

SCRBAR = 12
KPBAR = 15

def gen_type(typ, BUD=5.0):
    c = Stream()
    if typ == 'F':
        c(f'''
        s_mul_i32 s{sH[0]}, s{sJ}, 160
        s_add_u32 s{sH[0]}, s{sH[0]}, 512
        s_and_b32 s{sTMP}, s{sJ}, 1
        s_mul_i32 s{sTMP2}, s{sTMP}, 160
        s_add_u32 s{sH[2]}, s{sH[0]}, 128
        s_sub_u32 s{sH[2]}, s{sH[2]}, s{sTMP2}
        s_lshl_b32 s{sTMP}, s{sTMP}, 5
        s_add_u32 s{sH[0]}, s{sH[0]}, s{sTMP}
        s_add_u32 s{sH[1]}, s{sH[0]}, 64
        ''')
        for step in range(3):
            c(f's_lshl_b32 s{sTMP2}, s{sH[step]}, 1')
            mk_srd(c, SW[step][0], 14, sTMP2, 448 * 3584)
            mk_srd(c, SW[step][1], 16, sTMP2, 448 * 3584)
        c(f's_add_u32 s{sH[2]}, s{sH[2]}, s{sTMP}')
    else:
        c(f'''
        s_mul_i32 s{sTMP}, s{sJ}, 112
        s_add_u32 s{sTMP2}, s{sTMP}, 896
        ''')
        mk_srd(c, SW[0][0], 6, sTMP2, 448 * 2688)
        c(f's_add_u32 s{sTMP2}, s{sTMP}, 1792')
        mk_srd(c, SW[0][1], 6, sTMP2, 448 * 2688)
        mk_srd(c, SW[2][0], 6, sTMP, 448 * 2688)
        c(f's_lshl_b32 s{sH[1]}, s{sJ}, 6\ns_lshl_b32 s{sTMP2}, s{sJ}, 7')
        mk_srd(c, SW[1][0], 14, sTMP2, 448 * 3584)
        mk_srd(c, SW[1][1], 16, sTMP2, 448 * 3584)
    for s in range(3): dma(c, typ, s, 7 + s)
    c(f'''
    s_lshl_b32 s{sTMP}, s{sI}, 2
    s_add_u32 s{sTMP}, s{sTMP}, s{sB}
    s_mul_i32 s{sTMP2}, s{sTMP}, {144*1024}
    ''')
    for step in ([0, 1, 2] if typ == 'F' else [1]):
        c(f'''
        s_lshl_b32 s{sH[step]}, s{sH[step]}, 6
        s_add_u32 s{sH[step]}, s{sH[step]}, s{sTMP2}
        s_lshl_b32 s3, s{sG}, {11 if step < 2 else 10}
        s_add_u32 s{sH[step]}, s{sH[step]}, s3
        ''')
    lane_patterns(c, typ)
    if typ == 'H':
        c(f'''
        s_lshl_b32 s3, s{sJ}, 1
        s_add_u32 s3, s3, s{sG}
        ''')
        c(f'''
        s_lshl_b32 s{sE}, s{sI}, 2
        s_add_u32 s{sE}, s{sE}, s{sB}
        s_lshl_b32 s{sE}, s{sE}, 4
        s_add_u32 s{sE}, s{sE}, s3
        s_lshl_b32 s{sE}, s{sE}, 12
        s_add_u32 s{sE}, s{sE}, {EB}
        s_lshl_b32 s{sKPR}, s3, 2
        s_add_u32 s{sKPR}, s{sKPR}, s{sB}
        s_lshl_b32 s{sKPR}, s{sKPR}, 15
        s_add_u32 s{sKPR}, s{sKPR}, {KP}
        s_lshl_b32 s{sTMP}, s{sI}, 11
        s_add_u32 s{sKPW}, s{sKPR}, s{sTMP}
        s_lshl_b32 s{sTMP}, s{sI}, 7
        s_add_u32 s{sKPR}, s{sKPR}, s{sTMP}
        s_mul_i32 s{sTMP}, s3, 1568
        ''')
        mk_srd(c, SPHI, 8, sTMP, 16 * 1568)
        c(f'''
        s_lshl_b32 s{sKFW}, s3, 1
        s_and_b32 s{sTMP}, s{sB}, 1
        s_add_u32 s{sKFW}, s{sKFW}, s{sTMP}
        s_lshl_b32 s{sKFW}, s{sKFW}, 1
        s_lshr_b32 s{sTMP}, s{sI}, 3
        s_add_u32 s{sKFW}, s{sKFW}, s{sTMP}
        s_lshl_b32 s{sKFW}, s{sKFW}, 10
        s_lshr_b32 s{sTMP}, s{sB}, 1
        s_lshl_b32 s{sTMP}, s{sTMP}, 8
        s_add_u32 s{sKFW}, s{sKFW}, s{sTMP}
        s_and_b32 s{sTMP}, s{sI}, 1
        s_lshl_b32 s{sTMP}, s{sTMP}, 7
        s_add_u32 s{sKFW}, s{sKFW}, s{sTMP}
        s_bfe_u32 s{sTMP}, s{sI}, 0x10001
        s_lshl_b32 s{sTMP}, s{sTMP}, 9
        s_add_u32 s{sKFW}, s{sKFW}, s{sTMP}
        s_bfe_u32 s{sTMP}, s{sI}, 0x10002
        s_lshl_b32 s{sTMP}, s{sTMP}, 3
        s_add_u32 s{sKFW}, s{sKFW}, s{sTMP}
        s_add_u32 s{sKFW}, s{sKFW}, {KF}
        ''')
    return c

def phi_gather(c):
    T = vT
    c(f'''
    v_and_b32 v{T}, 63, v0
    v_bfe_u32 v{T+1}, v{T}, 3, 2
    v_and_b32 v{T+2}, 3, v{T}
    v_lshl_add_u32 v{T+1}, v{T+1}, 2, v{T+2}
    v_bfe_u32 v{T+2}, v{T}, 2, 1
    v_mad_u32_u24 v{T+1}, v{T+2}, 14, v{T+1}
    v_min_u32 v{T+1}, 27, v{T+1}
    v_lshrrev_b32 v{T+2}, 5, v{T}
    v_mul_u32_u24 v{T+2}, 224, v{T+2}
    v_lshl_add_u32 v{T+1}, v{T+1}, 1, v{T+2}
    v_mov_b32 v{T+3}, {hx(OOB)}
    v_cndmask_b32 v{T+2}, v{T+1}, v{T+3}, s[{sHI}:{sHI+1}]
    ''')
    for tp in range(2):
        for e in range(8):
            d = 16 * tp + 8 * (e >> 2) + (e & 3)
            a = T + 2 if (tp == 1 and e >= 4) else T + 1
            if e & 1: c(f'buffer_load_short_d16_hi v{T+6+4*tp+(e>>1)}, v{a}, {srd(SPHI)}, 0 offen offset:{d*56}')
            else: c(f'buffer_load_ushort v{vPHI+4*tp+(e>>1)}, v{a}, {srd(SPHI)}, 0 offen offset:{d*56}')

def phi_combine(c):
    for k in range(8):
        c(f'v_and_b32 v{vT+6+k}, 0xffff0000, v{vT+6+k}')
        c(f'v_or_b32 v{vPHI+k}, v{vPHI+k}, v{vT+6+k}')

def gen_k1(BUD=5.0):
    top = Stream()
    prologue_common(top)
    top(f's_cmp_lg_u32 s{sT}, 0\ns_cbranch_scc1 K1_H')
    text = []
    for typ in 'FH':
        c = Stream(top)
        n0 = len(c)
        c += gen_type(typ)
        c(f'''
        s_lshl_b32 s{sTMP}, s2, 7
        s_add_u32 s{sTMP}, s{sTMP}, {CNT}
        v_mov_b32 v48, s{sTMP}
        v_mov_b32 v49, {hx(OOB)}
        v_cmp_eq_u32 vcc, 0, v0
        v_cndmask_b32 v48, v49, v48, vcc
        v_mov_b32 v49, 0
        buffer_store_dword v49, v48, {srd(SWS)}, 0 offen {ST}
        ''')
        if typ == 'H':
            c(f'''
            s_lshl_b32 s{sTMP}, s{sJ}, 5
            v_mov_b32 v{vT+28}, s{sTMP}
            v_mov_b32 v{vT+27}, {hx(OOB)}
            v_cndmask_b32 v{vT+27}, v{vT+27}, v{vT+28}, vcc
            v_mov_b32 v{vT+26}, 1
            ''')
        layernorm(c)
        steps = main_loop(typ)
        if typ == 'F':
            c += steps[0]
            c += interleave(steps[1], Stream([GAP(2)]) + gelu_du(ACC[0], 0), BUD)
            c += interleave(steps[2], Stream([GAP(2)]) + gelu_du(ACC[1], 1), BUD + 1)
            c += gelu_half(ACC[0], 2)
        else:
            f0 = Stream(); phi_gather(f0); f0.p(GAP(30)); phi_combine(f0)
            c += interleave(steps[0], f0, BUD)
            both = Stream(steps[1] + [NEED('kp'), MARK('s2')] + steps[2])
            fill = Stream(kv_epi() + [SYNC('s2'), GAP(2)] + gelu_du(ACC[1], 1))
            c += interleave(both, fill, BUD + 1)
            A = ACC[0]; EP = ACC[0] + 16
            PL = vT + 29
            c(f'buffer_load_dword v{PL}, v{vT+28}, {srd(SDBG)}, 0 offen sc1')
            phi_front(c, A, 0)
            R = ACC[1]
            c(f'''
            v_and_b32 v{R+8}, 63, v0
            v_lshrrev_b32 v{R+9}, 3, v{R+8}
            v_and_b32 v{R+10}, 7, v{R+8}
            v_lshlrev_b32 v{R+9}, 11, v{R+9}
            v_lshl_add_u32 v{R+9}, v{R+10}, 4, v{R+9}
            v_add_u32 v{R+11}, 0x4000, v{R+9}
            v_lshrrev_b32 v{R+12}, 4, v{R+8}
            v_lshlrev_b32 v{R+12}, 1, v{R+12}
            v_lshl_add_u32 v{R+12}, v{R+10}, 4, v{R+12}
            v_and_b32 v{R+13}, 8, v{R+8}
            v_lshlrev_b32 v{R+13}, 27, v{R+13}
            v_or_b32 v{R+12}, v{R+12}, v{R+13}
            s_lshr_b32 s{sTMP}, s{sB}, 1
            s_and_b32 s{sTMP}, s{sTMP}, s{sI}
            s_and_b32 s{sTMP}, s{sTMP}, 1
            s_cmp_eq_u32 s{sTMP}, 1
            s_cselect_b32 s{sTMP}, 5, 99
            v_readfirstlane_b32 s3, v{PL}
            s_cmp_ge_u32 s3, 16
            s_cbranch_scc1 K1_POLLOK
            ''')
            c.p(BEGIN('spin'))
            c(f'''
            s_mov_b32 s{sTMP2}, 0x10000
            K1_SPIN:
            s_sleep 2
            buffer_load_dword v{PL}, v{vT+28}, {srd(SDBG)}, 0 offen sc1
            s_waitcnt vmcnt(0)
            v_readfirstlane_b32 s3, v{PL}
            s_sub_u32 s{sTMP2}, s{sTMP2}, 1
            s_cmp_eq_u32 s{sTMP2}, 0
            s_cbranch_scc1 K1_POLLOK
            s_cmp_lt_u32 s3, 16
            s_cbranch_scc1 K1_SPIN
            ''')
            c.p(END('spin'))
            c(f'''
            K1_POLLOK:
            buffer_load_dwordx4 {vr(R,4)}, v{R+9}, {srd(SWS)}, s{sKPR} offen sc1
            buffer_load_dwordx4 {vr(R+4,4)}, v{R+11}, {srd(SWS)}, s{sKPR} offen sc1
            ''')
            phi_exp(c, A, EP)
            O = vT + 6
            for sgn, src in ((0, EP), (1, A)):
                for tp in range(2):
                    o = O + 8 * sgn + 4 * tp
                    for k in range(4):
                        i = 8 * tp + 2 * k
                        if i < 14: c(f'v_cvt_pk_bf16_f32 v{o+k}, v{src+i}, v{src+i+1}')
                        else: c(f'v_mov_b32 v{o+k}, 0')
                    c(f'buffer_store_dwordx4 {vr(o,4)}, v{vL16}, {srd(SWS)}, s{sE} offen offset:{(2*sgn+tp)*1024} {ST}')
            for k in range(4): c(f'v_add_f32 v{R+k}, v{R+k}, v{R+4+k}')
            for k in range(4): c(f'v_add_f32_dpp v{R+k}, v{R+k}, v{R+k} row_ror:8 row_mask:0xf bank_mask:0xf')
            c(f'''
            v_permlane16_swap_b32 v{R}, v{R+1}
            v_permlane16_swap_b32 v{R+2}, v{R+3}
            v_add_f32 v{R}, v{R}, v{R+1}
            v_add_f32 v{R+2}, v{R+2}, v{R+3}
            v_permlane32_swap_b32 v{R}, v{R+2}
            v_add_f32 v{R}, v{R}, v{R+2}
            v_cmp_eq_u32 vcc, s{sTMP}, v{R+10}
            v_cndmask_b32 v{R}, v{R}, 1.0, vcc
            v_cvt_pk_bf16_f32 v{R}, v{R}, v{R}
            buffer_store_short v{R}, v{R+12}, {srd(SWS)}, s{sKFW} offen {ST}
            ''')
        c('s_endpgm')
        full = finish(c).split('\n')
        idx = next(k for k, l in enumerate(full) if 's_cbranch_scc1 K1_H' in l)
        if typ == 'F': text += full
        else: text += ['K1_H:'] + full[idx + 1:]
    text += ['K1_EXIT:', '    s_endpgm']
    return '\n'.join(text)
```

```python
from asmlib import *
from k1 import f2u, hx, LOG2E, HB, EB, KF, CNT, WS_END, OOB, ST, srd, vr, mk_srd

SXO = 28; SOUT = 32; SWD = 36; SWO = 40; SWS = 44
sW, sG, sRH, sRT, sCT, sTMP, sTMP2, sHB, sM0, sTMP3 = 48, 49, 50, 51, 52, 53, 54, 55, 56, 57
sQ = 60
sQH = 68
sHI = 76
sOE, sOK, sOO, sOC = 78, 79, 80, 81
vL16 = 1; vD = 2; vPAT = 3; vPWO = [4, 5]; vC = 6; vRW = 7; vRR = 8; vXO = 9; vCN = 10; vPL = 11; vT = 12
WF = 24; ACF = 48; ACS = 80; HF = 112
RING = 0; SLOT = 32768; WOB = 98304
PSTR = 272; PSZ = 64 * PSTR

def gen_k2(LOOK=4):
    c = Stream()
    c(f'''
    s_cmp_ge_u32 s2, 256
    s_cbranch_scc1 K2_EXIT
    s_load_dwordx8 s[4:11], s[0:1], 0
    s_load_dwordx2 s[18:19], s[0:1], 56
    s_load_dwordx2 s[20:21], s[0:1], 64
    s_load_dwordx2 s[24:25], s[0:1], 80
    v_lshrrev_b32 v{vT}, 6, v0
    v_and_b32 v0, 63, v0
    v_readfirstlane_b32 s{sW}, v{vT}
    s_and_b32 s{sTMP}, s2, 7
    s_lshr_b32 s{sTMP2}, s2, 3
    s_mul_i32 s{sRT}, s{sTMP2}, 37
    s_lshr_b32 s{sRT}, s{sRT}, 8
    s_mul_i32 s{sCT}, s{sRT}, 7
    s_sub_u32 s{sCT}, s{sTMP2}, s{sCT}
    s_lshl_b32 s{sTMP3}, s{sTMP}, 2
    s_add_u32 s{sRT}, s{sRT}, s{sTMP3}
    s_lshr_b32 s{sG}, s{sW}, 1
    s_and_b32 s{sRH}, s{sW}, 1
    s_mov_b32 s{sHI}, 0
    s_mov_b32 s{sHI+1}, -1
    v_lshlrev_b32 v{vL16}, 4, v0
    ''')
    c(f'''
    s_lshl_b32 s{sOC}, s{sTMP}, 3
    s_lshr_b32 s{sTMP3}, s{sTMP2}, 4
    s_lshl_b32 s{sTMP3}, s{sTMP3}, 2
    s_add_u32 s{sOC}, s{sOC}, s{sTMP3}
    s_add_u32 s{sOC}, s{sOC}, s{sW}
    s_and_b32 s{sTMP3}, s{sTMP2}, 15
    s_lshl_b32 s{sOE}, s{sOC}, 4
    s_add_u32 s{sOE}, s{sOE}, s{sTMP3}
    s_lshl_b32 s{sOE}, s{sOE}, 12
    s_add_u32 s{sOE}, s{sOE}, {EB}
    s_lshl_b32 s{sOK}, s{sTMP3}, 12
    s_add_u32 s{sOK}, s{sOK}, {KF}
    s_mul_i32 s{sOO}, s{sOC}, {144*1024}
    s_lshl_b32 s{sTMP3}, s{sTMP3}, 11
    s_add_u32 s{sOO}, s{sOO}, s{sTMP3}
    s_add_u32 s{sOO}, s{sOO}, {HB + 112*1024}
    s_lshl_b32 s{sOC}, s{sOC}, 7
    s_add_u32 s{sOC}, s{sOC}, {CNT}
    s_waitcnt lgkmcnt(0)
    ''')
    mk_srd(c, SWS, 24, None, WS_END)
    c(f's_cmp_ge_u32 s{sW}, 4\ns_cbranch_scc1 K2_NOO')
    c.p(BEGIN('o'))
    KA = HF; EBr = HF + 16; AP = ACF; AM = ACF + 16
    for k in range(4):
        c(f'buffer_load_dwordx4 {vr(KA+4*k,4)}, v{vL16}, {srd(SWS)}, s{sOK} offen offset:{1024*k}')
        c(f'buffer_load_dwordx4 {vr(EBr+4*k,4)}, v{vL16}, {srd(SWS)}, s{sOE} offen offset:{1024*k}')
    c(f'''
    v_mfma_f32_32x32x16_bf16 {vr(AP,16)}, {vr(KA,4)}, {vr(EBr,4)}, 0
    v_mfma_f32_32x32x16_bf16 {vr(AP,16)}, {vr(KA+4,4)}, {vr(EBr+4,4)}, {vr(AP,16)}
    v_mfma_f32_32x32x16_bf16 {vr(AM,16)}, {vr(KA+8,4)}, {vr(EBr+8,4)}, 0
    v_mfma_f32_32x32x16_bf16 {vr(AM,16)}, {vr(KA+12,4)}, {vr(EBr+12,4)}, {vr(AM,16)}
    v_rcp_f32 v{vT}, v{AP+13}
    v_rcp_f32 v{vT+1}, v{AM+13}
    v_mov_b32 v{vT+2}, {hx(f2u(1e-6))}
    v_fmac_f32 v{vT+2}, v{vT}, v{AP+12}
    v_fmac_f32 v{vT+2}, v{vT+1}, v{AM+12}
    v_rcp_f32 v{vT+2}, v{vT+2}
    v_mul_f32 v{vT}, v{vT}, v{vT+2}
    v_mul_f32 v{vT+1}, v{vT+1}, v{vT+2}
    v_mov_b32 v{vT+3}, v{vT}
    v_mov_b32 v{vT+4}, v{vT+1}
    v_permlane32_swap_b32 v{vT+3}, v{vT}
    v_permlane32_swap_b32 v{vT+4}, v{vT+1}
    ''')
    for i in range(16): c(f'v_mul_f32 v{AP+i}, v{vT}, v{AP+i}')
    for i in range(16): c(f'v_fmac_f32 v{AP+i}, v{vT+1}, v{AM+i}')
    for k in range(8): c(f'v_cvt_pk_bf16_f32 v{AM+k}, v{AP+2*k}, v{AP+2*k+1}')
    c(f'''
    v_cndmask_b32 v{AM+6}, v{AM+6}, 0, s[{sHI}:{sHI+1}]
    v_cndmask_b32 v{AM+7}, v{AM+7}, 0, s[{sHI}:{sHI+1}]
    ''')
    c(f'buffer_store_dwordx4 {vr(AM,4)}, v{vL16}, {srd(SWS)}, s{sOO} offen {ST}', tag='ost')
    c(f'buffer_store_dwordx4 {vr(AM+4,4)}, v{vL16}, {srd(SWS)}, s{sOO} offen offset:1024 {ST}', tag='ost')
    c.p(END('o'))
    c('K2_NOO:')
    c(f'''
    v_mov_b32 v{vT+5}, {hx(OOB)}
    v_cmp_eq_u32 vcc, 0, v0
    v_cndmask_b32 v{vT+5}, v{vT+5}, 0, vcc
    v_mov_b32 v{vT+6}, 1
    s_cmp_lt_u32 s{sTMP2}, 28
    s_cbranch_scc1 K2_TILE
    ''')
    c.p(BEGIN('notile'))
    c(f'''
    s_cmp_ge_u32 s{sW}, 4
    s_cbranch_scc1 K2_EXIT
    s_waitcnt vmcnt(0)
    buffer_atomic_add v{vT+6}, v{vT+5}, {srd(SWS)}, s{sOC} offen sc1
    s_endpgm
    ''')
    c.p(END('notile'))
    c('K2_TILE:')
    c(f's_lshl_b32 s{sTMP}, s{sCT}, 7')
    mk_srd(c, SWD, 18, sTMP, 1792 * 896)
    mk_srd(c, SWO, 10, sTMP, 448 * 896)
    c(f'''
    s_mul_i32 s{sTMP2}, s{sRT}, {64*896}
    s_add_u32 s{sTMP}, s{sTMP}, s{sTMP2}
    ''')
    mk_srd(c, SXO, 4, sTMP, 2048 * 896)
    mk_srd(c, SOUT, 20, sTMP, 2048 * 896)
    c(f'''
    s_lshl_b32 s{sTMP}, s{sRT}, 1
    s_add_u32 s{sTMP}, s{sTMP}, s{sRH}
    s_mul_i32 s{sHB}, s{sTMP}, {144*1024}
    s_lshl_b32 s{sTMP}, s{sTMP}, 7
    s_add_u32 s{sTMP}, s{sTMP}, {CNT}
    v_mov_b32 v{vCN}, s{sTMP}
    s_mul_i32 s{sTMP3}, s{sG}, {28*1024}
    s_add_u32 s{sTMP3}, s{sTMP3}, s{sHB}
    ''')
    for q in range(7):
        c(f'''
        s_add_u32 s{sTMP}, s{sCT}, {q}
        s_cmp_ge_u32 s{sTMP}, 7
        s_cselect_b32 s{sTMP2}, 7, 0
        s_sub_u32 s{sTMP}, s{sTMP}, s{sTMP2}
        s_mul_i32 s{sQ+q}, s{sTMP}, {64*896}
        s_lshl_b32 s{sTMP}, s{sTMP}, 12
        s_add_u32 s{sQH+q}, s{sTMP}, s{sTMP3}
        ''')
    c(f'''
    v_lshrrev_b32 v{vT}, 3, v0
    v_and_b32 v{vT+1}, 7, v0
    v_bfe_u32 v{vT+2}, v0, 4, 1
    v_lshlrev_b32 v{vT+3}, 2, v{vT+2}
    v_xor_b32 v{vT+3}, v{vT+3}, v{vT+1}
    v_mul_u32_u24 v{vT+4}, 896, v{vT}
    v_lshl_add_u32 v{vT+7}, v{vT+3}, 4, v{vT+4}
    s_mul_i32 s{sTMP}, s{sG}, 448
    s_lshl_b32 s{sTMP2}, s{sRH}, 5
    s_add_u32 s{sTMP}, s{sTMP}, s{sTMP2}
    s_mul_i32 s{sTMP}, s{sTMP}, 896
    v_add_u32 v{vD}, s{sTMP}, v{vT+7}
    s_lshl_b32 s{sM0}, s{sW}, 12
    ''')
    def dma_wd(q):
        for k in range(4):
            c(f's_add_u32 m0, s{sM0}, {RING + (q % 3)*SLOT + k*1024}')
            c(f's_add_u32 s{sTMP}, s{sQ+q}, {k*8*896}')
            c(f'buffer_load_dwordx4 v{vD}, {srd(SWD)}, s{sTMP} offen lds', tag=f'W{q}')
    def hload(q):
        for t in range(4):
            c(f'buffer_load_dwordx4 {vr(HF+4*(4*q+t),4)}, v{vL16}, {srd(SWS)}, s{sQH+q} offen offset:{t*1024}')
    def dma_wo():
        c(f's_mul_i32 s{sTMP2}, s{sW}, {56*896}\ns_mul_i32 s{sTMP3}, s{sW}, 7168')
        for k in range(7):
            c(f's_add_u32 m0, s{sTMP3}, {WOB + k*1024}')
            c(f's_add_u32 s{sTMP}, s{sTMP2}, {k*8*896}')
            c(f'buffer_load_dwordx4 v{vT+7}, {srd(SWO)}, s{sTMP} offen lds', tag='WO')
    dma_wd(0); hload(0); dma_wd(1); hload(1)
    c(f's_cmp_ge_u32 s{sW}, 4\ns_cbranch_scc1 K2_NOO2')
    c.p(BEGIN('o'))
    c.p(WAITTAG('ost'))
    c(f'buffer_atomic_add v{vT+6}, v{vT+5}, {srd(SWS)}, s{sOC} offen sc1')
    c.p(END('o'))
    c('K2_NOO2:')
    dma_wd(2); hload(2); hload(3)
    c(f'''
    v_lshrrev_b32 v{vT+8}, 5, v0
    v_bfe_u32 v{vT+9}, v0, 2, 2
    v_lshl_add_u32 v{vT+9}, v{vT+8}, 2, v{vT+9}
    v_lshlrev_b32 v{vT+9}, 7, v{vT+9}
    v_and_b32 v{vT+10}, 3, v0
    v_lshlrev_b32 v{vT+10}, 3, v{vT+10}
    v_lshl_add_u32 v{vT+10}, v{vT+2}, 5, v{vT+10}
    v_bfe_u32 v{vT+11}, v0, 3, 1
    v_lshl_add_u32 v{vT+10}, v{vT+11}, 6, v{vT+10}
    v_add_u32 v{vT+9}, v{vT+9}, v{vT+10}
    s_lshl_b32 s{sTMP}, s{sG}, 13
    v_add_u32 v{vPAT}, s{sTMP}, v{vT+9}
    s_mul_i32 s{sTMP}, s{sG}, {112*128}
    s_add_u32 s{sTMP}, s{sTMP}, {WOB}
    v_add_u32 v{vPWO[0]}, s{sTMP}, v{vT+9}
    v_lshlrev_b32 v{vT+11}, 9, v{vT+8}
    v_sub_u32 v{vPWO[1]}, v{vPWO[0]}, v{vT+11}
    ''')
    c(f'''
    v_and_b32 v{vT+10}, 31, v0
    s_lshl_b32 s{sTMP}, s{sRH}, 5
    v_add_u32 v{vT+10}, s{sTMP}, v{vT+10}
    v_mul_u32_u24 v{vT+10}, {PSTR}, v{vT+10}
    v_lshl_add_u32 v{vT+10}, v{vT+8}, 4, v{vT+10}
    s_mul_i32 s{sTMP}, s{sG}, {PSZ}
    v_add_u32 v{vRW}, s{sTMP}, v{vT+10}
    s_lshl_b32 s{sTMP}, s{sW}, 3
    v_add_u32 v{vT+10}, s{sTMP}, v{vT}
    v_mul_u32_u24 v{vRR}, {PSTR}, v{vT+10}
    v_lshl_add_u32 v{vRR}, v{vT+1}, 5, v{vRR}
    v_mul_u32_u24 v{vXO}, 896, v{vT+10}
    v_lshl_add_u32 v{vXO}, v{vT+1}, 4, v{vXO}
    ''')
    uses = [(r, cb) for r in range(36) for cb in range(2)]
    XR = WF - 4
    def barrier_for(r):
        q = r // 4
        if r < 28:
            c.p(WAITTAG(f'W{q}')); c('s_barrier')
            if q >= 2 and q + 1 <= 6: dma_wd(q + 1)
            if q == 0: hload(4)
            if q == 1: hload(5)
            if q == 2: hload(6)
            if q == 3: dma_wo()
            if q == 4:
                c(f'buffer_load_dword v{vPL}, v{vCN}, {srd(SWS)}, 0 offen sc1')
            if q == 5:
                c(f'''
                v_readfirstlane_b32 s3, v{vPL}
                s_cmp_ge_u32 s3, 16
                s_cbranch_scc1 K2_POLLOK
                ''')
                c.p(BEGIN('spin'))
                c(f'''
                s_mov_b32 s{sTMP2}, 0x10000
                K2_SPIN:
                s_sleep 2
                buffer_load_dword v{vPL}, v{vCN}, {srd(SWS)}, 0 offen sc1
                s_waitcnt vmcnt(0)
                v_readfirstlane_b32 s3, v{vPL}
                s_sub_u32 s{sTMP2}, s{sTMP2}, 1
                s_cmp_eq_u32 s{sTMP2}, 0
                s_cbranch_scc1 K2_POLLOK
                s_cmp_lt_u32 s3, 16
                s_cbranch_scc1 K2_SPIN
                ''')
                c.p(END('spin'))
                c('K2_POLLOK:')
                c(f's_lshl_b32 s{sTMP}, s{sG}, 13\ns_add_u32 s{sTMP}, s{sTMP}, s{sHB}\ns_add_u32 s{sTMP}, s{sTMP}, {112*1024}\ns_add_u32 s{sTMP2}, s{sTMP}, 4096')
                for t in range(8):
                    c(f'buffer_load_dwordx4 {vr(HF+4*(28+t),4)}, v{vL16}, {srd(SWS)}, s{sTMP if t < 4 else sTMP2} offen offset:{(t&3)*1024} sc1')
                c(f'buffer_load_dwordx4 {vr(XR,4)}, v{vXO}, {srd(SXO)}, 0 offen')
            c(f'v_add_u32 v{vC}, {RING + (q % 3)*SLOT}, v{vPAT}')
            c(f'v_xor_b32 v{vT}, 64, v{vC}')
        elif r == 28:
            c.p(WAITTAG('WO')); c('s_barrier')
            c(f'v_xor_b32 v{vT+1}, 64, v{vPWO[0]}\nv_xor_b32 v{vT+2}, 64, v{vPWO[1]}')
    def reads(u):
        r, cb = uses[u]
        if cb == 0 and r % 4 == 0: barrier_for(r)
        b = WF + 4 * (u % 6)
        for rd in range(2):
            if r < 28:
                a = vC if cb == 0 else vT
                c(f'ds_read_b64_tr_b16 {vr(b+2*rd,2)}, v{a} offset:{(r%4)*2048 + rd*1024}')
            else:
                hh, tp = divmod(r - 28, 2)
                pad = tp == 1 and rd == 1
                a = (vPWO[1] if pad else vPWO[0]) if cb == 0 else (vT + 2 if pad else vT + 1)
                c(f'ds_read_b64_tr_b16 {vr(b+2*rd,2)}, v{a} offset:{(28*hh + 16*tp + 8*rd)*128}')
    def pwrite(acc):
        for cb in range(2):
            for j in range(4):
                c(f'ds_write_b128 v{vRW}, {vr(acc+16*cb+4*j,4)} offset:{cb*128 + j*32}', tag='pw')
    def pread(dst):
        for p in range(4):
            for k in range(2):
                c(f'ds_read_b128 {vr(dst+8*p+4*k,4)}, v{vRR} offset:{p*PSZ + 16*k}', tag='pr')
    def psum(dst):
        for i in range(8): c(f'v_add_f32 v{dst+i}, v{dst+i}, v{dst+8+i}')
        for i in range(8): c(f'v_add_f32 v{dst+16+i}, v{dst+16+i}, v{dst+24+i}')
        for i in range(8): c(f'v_add_f32 v{dst+i}, v{dst+i}, v{dst+16+i}')
    for u in range(LOOK): reads(u)
    FS = HF
    for u in range(len(uses)):
        r, cb = uses[u]
        if u + LOOK < len(uses): reads(u + LOOK)
        acc = (ACF if r < 28 else ACS) + 16 * cb
        first = r == 0 or r == 28
        b = WF + 4 * (u % 6)
        c(f'v_mfma_f32_32x32x16_bf16 {vr(acc,16)}, {vr(b,4)}, {vr(HF+4*r,4)}, ' + ('0' if first else vr(acc, 16)))
        if (r, cb) == (28, 1):
            c('s_barrier')
            pwrite(ACF)
        if (r, cb) == (31, 1):
            c.p(WAITTAG('pw')); c('s_barrier')
            pread(FS)
        if (r, cb) == (33, 1):
            psum(FS)
            for i in range(8): c(f'v_mul_f32 v{FS+8+i}, {hx(f2u(-LOG2E))}, v{FS+i}')
            for i in range(8): c(f'v_exp_f32 v{FS+8+i}, v{FS+8+i}')
            for i in range(8): c(f'v_add_f32 v{FS+8+i}, 1.0, v{FS+8+i}')
            for i in range(8): c(f'v_rcp_f32 v{FS+8+i}, v{FS+8+i}')
            for i in range(8): c(f'v_mul_f32 v{FS+i}, v{FS+i}, v{FS+8+i}')
    c('s_barrier')
    pwrite(ACS)
    c.p(WAITTAG('pw')); c('s_barrier')
    SS = HF + 32
    pread(SS)
    for k in range(4):
        c(f'v_lshlrev_b32 v{FS+8+2*k}, 16, v{XR+k}\nv_and_b32 v{FS+9+2*k}, 0xffff0000, v{XR+k}')
    psum(SS)
    for i in range(8): c(f'v_fmac_f32 v{FS+8+i}, v{SS+i}, v{FS+i}')
    for k in range(4): c(f'v_cvt_pk_bf16_f32 v{XR+k}, v{FS+8+2*k}, v{FS+9+2*k}')
    c(f'buffer_store_dwordx4 {vr(XR,4)}, v{vXO}, {srd(SOUT)}, 0 offen')
    c('K2_EXIT:\ns_endpgm')
    return finish(c)
```

```python
import sys; sys.path.insert(0, 'gen')
from asmlib import *
import k1, k2
NAME = 'recurrent_scan__linear_kernel_hedgehog__glu_gated_geglu__prompt'
hdr = open(f'cdna_kernels/{NAME}.s.ref').read().split('; Override launch')[0]
s = hdr
s += '; @launch kernel=hh_k1_kernel grid=(256,1,1) block=(512,1,1) lds=163840\n'
s += '; @launch kernel=hh_k2_kernel grid=(256,1,1) block=(512,1,1) lds=163840\n'
s += '.amdgcn_target "amdgcn-amd-amdhsa--gfx950"\n.text\n'
s += kernel('hh_k1_kernel', k1.gen_k1())
s += kernel('hh_k2_kernel', k2.gen_k2())
out = sys.argv[1] if len(sys.argv) > 1 else f'cdna_kernels/{NAME}.s'
open(out, 'w').write(s)
print('wrote', out, len(s.split('\n')), 'lines')
```

```python
import re

TRANS = ('v_exp_f32', 'v_log_f32', 'v_rcp_f32', 'v_rsq_f32', 'v_sqrt_f32', 'v_sin_f32', 'v_cos_f32')

def _regs(tok):
    tok = tok.strip()
    tok = tok.lstrip('-')
    m = re.fullmatch(r'abs\((.*)\)', tok) or re.fullmatch(r'\|(.*)\|', tok)
    if m: tok = m.group(1)
    m = re.fullmatch(r'([vsa])(\d+)', tok)
    if m: return [(m.group(1), int(m.group(2)))]
    m = re.fullmatch(r'([vsa])\[(\d+):(\d+)\]', tok)
    if m: return [(m.group(1), i) for i in range(int(m.group(2)), int(m.group(3)) + 1)]
    if tok in ('vcc', 'exec', 'm0', 'scc'): return [tok]
    if tok in ('vcc_lo', 'vcc_hi'): return ['vcc']
    if tok in ('exec_lo', 'exec_hi'): return ['exec']
    return []

class I:
    __slots__ = ('text', 'op', 'rd', 'wr', 'kind', 'tag', 'arg', 'ops', 'passes', 'srcc', 'ab', 'cost')
    def __init__(self, text, tag=None):
        self.text = text; self.tag = tag; self.arg = None
        t = text.split(';')[0].strip()
        parts = t.split(None, 1)
        op = parts[0]; self.op = op
        rest = parts[1] if len(parts) > 1 else ''
        ops = []; depth = 0; cur = ''
        for ch in rest:
            if ch in '[(': depth += 1
            if ch in '])': depth -= 1
            if ch == ',' and depth == 0: ops.append(cur.strip()); cur = ''
            else: cur += ch
        if cur.strip(): ops.append(cur.strip())
        mods = ''
        if ops:
            sp = ops[-1].split(None, 1)
            ops[-1] = sp[0]
            if len(sp) > 1: mods = sp[1]
        self.ops = ops
        R = [_regs(o) for o in ops]
        rd = set(); wr = set(); kind = 'other'
        self.passes = 0; self.srcc = (); self.ab = ()
        if op.endswith(':'):
            kind = 'label'
        elif op.startswith('v_mfma'):
            kind = 'mfma'; wr |= set(R[0]); rd |= set(R[1]) | set(R[2]) | set(R[3])
            self.passes = 8 if '32x32' in op else (2 if '4x4x4' in op else 4)
            self.srcc = tuple(R[3]); self.ab = tuple(R[1]) + tuple(R[2])
        elif op.startswith('v_'):
            kind = 'trans' if op.replace('_e32', '').replace('_e64', '') in TRANS else 'valu'
            if op == 'v_nop': pass
            else:
                wr |= set(R[0])
                for r in R[1:]: rd |= set(r)
                if op.startswith(('v_fmac', 'v_dot2c', 'v_pk_fmac')): rd |= set(R[0])
                if op.startswith(('v_permlane32_swap', 'v_permlane16_swap')):
                    rd |= set(R[0]); wr |= set(R[1])
                if op.startswith(('v_add_co', 'v_sub_co', 'v_addc_co', 'v_subb_co', 'v_mad_u64_u32')):
                    wr |= set(R[1]); rd -= set(R[1])
                    if op.startswith(('v_addc', 'v_subb')): rd |= set(R[-1])
                if '_dpp' in op or op.startswith('v_writelane'): rd |= set(R[0])
                if '_sdwa' in op and 'UNUSED_PRESERVE' in mods: rd |= set(R[0])
            rd.add('exec')
        elif op.startswith('ds_'):
            kind = 'ds'
            if op.startswith(('ds_read', 'ds_bpermute', 'ds_permute', 'ds_swizzle')):
                wr |= set(R[0])
                for r in R[1:]: rd |= set(r)
            else:
                for r in R: rd |= set(r)
            rd.add('exec')
        elif op.startswith(('buffer_', 'global_')):
            kind = 'vmem'
            lds = re.search(r'\blds\b', mods) is not None
            if op in ('buffer_wbl2', 'buffer_inv'):
                pass
            elif op.startswith(('buffer_load', 'global_load')) and not lds:
                wr |= set(R[0])
                for r in R[1:]: rd |= set(r)
                if 'd16' in op: rd |= set(R[0])
            elif 'atomic' in op and re.search(r'\bsc0\b', mods):
                wr |= set(R[0])
                for r in R: rd |= set(r)
            else:
                for r in R: rd |= set(r)
                if lds: rd.add('m0')
            rd.add('exec')
        elif op.startswith(('s_load', 's_memtime', 's_memrealtime', 's_buffer_load')):
            kind = 'smem'; wr |= set(R[0])
            for r in R[1:]: rd |= set(r)
        elif op == 's_waitcnt': kind = 'wait'
        elif op == 's_barrier': kind = 'barrier'
        elif op == 's_nop': kind = 'nop'; self.arg = int(ops[0])
        elif op.startswith(('s_cbranch', 's_branch')):
            kind = 'branch'
        elif op in ('s_endpgm', 's_sleep', 's_setprio'): kind = 'salu'
        elif op.startswith('s_'):
            kind = 'salu'
            if op.startswith(('s_cmp', 's_bitcmp')):
                for r in R: rd |= set(r)
            else:
                wr |= set(R[0])
                for r in R[1:]: rd |= set(r)
                if 'saveexec' in op: wr.add('exec'); rd.add('exec')
        self.rd = rd; self.wr = wr; self.kind = kind
        self.cost = {'valu': 1, 'trans': 2, 'mfma': 2, 'salu': 0.5, 'vmem': 0.5, 'ds': 0.5}.get(kind, 0)
        if op.startswith(('s_addc', 's_subb', 's_cselect')): self.cost = 0
        if op.startswith(('v_permlane32_swap', 'v_permlane16_swap')): self.cost = 2
    def __repr__(self): return self.text

class P:
    def __init__(self, kind, arg=None):
        self.kind = kind; self.arg = arg; self.cost = 0
    def __repr__(self): return f'<{self.kind} {self.arg}>'

def WAITTAG(*tags): return P('waittag', tags)
def WAITLDS(): return P('waitlds')
def BEGIN(region): return P('begin', region)
def END(region): return P('end', region)
def GAP(n): return P('gap', n)
def SYNC(name): return P('sync', name)
def MARK(name): return P('mark', name)
def NEED(name): return P('need', name)
def DONE(name): return P('done', name)
def NOFILL(): return P('nofill')
def BUDGET(x): return P('budget', x)
def WAITREG(regs): return P('waitreg', regs)

class Stream(list):
    def __call__(self, text, tag=None):
        for line in text.strip().split('\n'):
            line = line.strip()
            if not line or line.startswith(';'): continue
            self.append(I(line, tag))
        return self
    def p(self, x): self.append(x); return self

def interleave(main, fill, budget):
    out = Stream(); fi = 0; gap = 0; marks = set(); credit = 0.0; nofill = False
    def emit_fill(limit, force_until=None):
        nonlocal fi, gap, budget
        spent = 0
        while fi < len(fill):
            f = fill[fi]
            if isinstance(f, P) and f.kind == 'budget':
                budget = f.arg; fi += 1; continue
            if isinstance(f, P) and f.kind == 'gap':
                fi += 1
                if force_until is None:
                    gap = f.arg; return spent
                continue
            if isinstance(f, P) and f.kind == 'sync':
                if f.arg not in marks:
                    assert force_until is None, f'need {force_until} blocked by sync {f.arg}'
                    return spent
                fi += 1; continue
            if isinstance(f, P) and f.kind == 'done':
                marks.add('done:' + f.arg); fi += 1
                if force_until == f.arg: return spent
                continue
            if force_until is None and spent + f.cost > limit and f.cost > 0: return spent
            out.append(f); spent += f.cost; fi += 1
        return spent
    for m in main:
        if isinstance(m, P) and m.kind == 'mark':
            marks.add(m.arg); continue
        if isinstance(m, P) and m.kind == 'need':
            if 'done:' + m.arg not in marks:
                emit_fill(0, force_until=m.arg); gap = 0
            continue
        if isinstance(m, P) and m.kind == 'nofill':
            nofill = True; continue
        out.append(m)
        if isinstance(m, I) and m.kind == 'mfma':
            if gap > 0: gap -= 1; credit = 0.0; nofill = False; continue
            if nofill: nofill = False; continue
            credit += budget
            credit -= emit_fill(credit)
            credit = min(credit, 2.0)
    while fi < len(fill):
        f = fill[fi]
        if isinstance(f, P) and f.kind in ('gap', 'sync', 'done', 'budget'):
            if f.kind == 'sync': assert f.arg in marks, f.arg
            fi += 1; continue
        out.append(f); fi += 1
    return out

class _E:
    __slots__ = ('dst', 'tag', 'region')
    def __init__(self, dst, tag, region): self.dst = dst; self.tag = tag; self.region = region

def insert_waits(code):
    out = Stream()
    vm = []; lg = []; region = None; saved = None
    smem_pending = False
    def count_younger(q, idx):
        return sum(1 for e in q[idx + 1:] if e.region is None or e.region == region)
    def do_wait(vi, li):
        nonlocal vm, lg
        parts = []
        if vi is not None:
            n = min(count_younger(vm, vi), 63); parts.append(f'vmcnt({n})'); vm = vm[vi + 1:]
        if li is not None:
            n = min(count_younger(lg, li), 15); parts.append(f'lgkmcnt({n})'); lg = lg[li + 1:]
        if parts:
            if out and isinstance(out[-1], I) and out[-1].kind == 'wait':
                d = dict(re.findall(r'(\w+)\((\d+)\)', out[-1].text))
                for k, v in re.findall(r'(\w+)\((\d+)\)', ' '.join(parts)):
                    d[k] = str(min(int(v), int(d.get(k, 99))))
                out[-1] = I('s_waitcnt ' + ' '.join(f'{k}({v})' for k, v in d.items()))
            else:
                out.append(I('s_waitcnt ' + ' '.join(parts)))
    for ins in code:
        if isinstance(ins, P):
            if ins.kind == 'waittag':
                vi = max([i for i, e in enumerate(vm) if e.tag in ins.arg], default=None)
                li = max([i for i, e in enumerate(lg) if e.tag in ins.arg], default=None)
                if li is not None and smem_pending:
                    out.append(I('s_waitcnt lgkmcnt(0)')); lg = []; smem_pending = False; li = None
                do_wait(vi, li)
            elif ins.kind == 'waitreg':
                touch = set(ins.arg)
                vi = max([i for i, e in enumerate(vm) if e.dst & touch], default=None)
                li = max([i for i, e in enumerate(lg) if e.dst & touch], default=None)
                if li is not None and smem_pending:
                    out.append(I('s_waitcnt lgkmcnt(0)')); lg = []; smem_pending = False; li = None
                do_wait(vi, li)
            elif ins.kind == 'waitlds':
                if lg: do_wait(None, len(lg) - 1)
            elif ins.kind == 'begin':
                assert region is None; region = ins.arg; saved = (list(vm), list(lg)); out.append(ins)
            elif ins.kind == 'end':
                def merge(pre, now):
                    keep = [e for e in pre if not (e.region == region and e not in now)]
                    return keep + [e for e in now if e not in pre]
                vm = merge(saved[0], vm); lg = merge(saved[1], lg); region = None; out.append(ins)
            else:
                raise ValueError(ins)
            continue
        if ins.kind == 'wait':
            m = re.search(r'vmcnt\((\d+)\)', ins.text)
            if m and int(m.group(1)) == 0: vm = []
            m = re.search(r'lgkmcnt\((\d+)\)', ins.text)
            if m and int(m.group(1)) == 0: lg = []; smem_pending = False
            out.append(ins); continue
        touch = ins.rd | ins.wr
        vi = max([i for i, e in enumerate(vm) if e.dst & touch], default=None)
        li = max([i for i, e in enumerate(lg) if e.dst & touch], default=None)
        if ins.kind == 'vmem' and 'd16' in ins.op and vi is not None and not (vm[vi].dst & (ins.rd - ins.wr)):
            vi = None
        if li is not None and smem_pending:
            out.append(I('s_waitcnt lgkmcnt(0)')); lg = []; smem_pending = False; li = None
        do_wait(vi, li)
        out.append(ins)
        if ins.kind == 'vmem': vm.append(_E(set(ins.wr), ins.tag, region))
        elif ins.kind == 'ds': lg.append(_E(set(ins.wr), ins.tag, region))
        elif ins.kind == 'smem': lg.append(_E(set(ins.wr), ins.tag, region)); smem_pending = True
    return out

def _need(p, c):
    n = 0
    pv = p.kind in ('valu', 'trans')
    cv = c.kind in ('valu', 'trans')
    vw = {r for r in p.wr if isinstance(r, tuple) and r[0] in 'va'}
    sw = {r for r in p.wr if (isinstance(r, tuple) and r[0] == 's') or r == 'vcc'}
    if pv:
        if c.kind == 'mfma' and vw & c.rd: n = max(n, 2)
        if p.kind == 'trans' and c.kind in ('valu', 'mfma') and vw & c.rd: n = max(n, 1)
        if p.kind == 'trans' and c.kind == 'trans' and vw & c.rd: n = max(n, 1)
        if cv and (c.op.startswith('v_permlane') or '_dpp' in c.op) and vw & c.rd: n = max(n, 2)
        if cv and c.op.startswith(('v_readlane', 'v_readfirstlane')) and vw & c.rd: n = max(n, 1)
        if cv and sw & c.rd: n = max(n, 4 if c.op.startswith(('v_readlane', 'v_writelane')) else 2)
        if c.kind == 'vmem' and sw & c.rd: n = max(n, 5)
        if c.kind == 'salu' and sw & c.rd: n = max(n, 1)
        if '_sdwa' in p.op and cv and vw & (c.rd | c.wr): n = max(n, 1)
        if p.op.startswith('v_dot') and not (c.op == p.op) and vw & (c.rd | c.wr): n = max(n, 3)
        if p.op.startswith('v_dot') and c.op == p.op and vw & (c.rd - c.wr): n = max(n, 3)
        if 'exec' in p.wr: n = max(n, 5)
    if p.kind == 'mfma':
        big = {8: 12, 4: 8, 2: 5}[p.passes]
        if c.kind == 'mfma':
            if vw & set(c.ab): n = max(n, big)
            if vw & set(c.srcc):
                if not (set(c.srcc) == vw and c.passes == p.passes): n = max(n, max(big - 2, 4))
                elif p.passes == 2: n = max(n, 2)
            elif vw & c.wr: n = max(n, big)
        elif c.kind in ('valu', 'trans', 'vmem', 'ds'):
            if vw & (c.rd | c.wr): n = max(n, big)
            if set(p.srcc) & c.wr: n = max(n, p.passes - 1)
    if p.kind == 'salu' and 'm0' in p.wr and 'm0' in c.rd and c.kind in ('vmem', 'ds'): n = max(n, 1)
    if p.kind == 'vmem' and re.search(r'store_dwordx[34]', p.op):
        data = set(_regs(p.ops[0] if p.op.startswith('buffer') else p.ops[1]))
        if data & c.wr: n = max(n, 2)
    return n

def insert_nops(code):
    out = Stream(); hist = []
    saved = None
    for ins in code:
        if isinstance(ins, P):
            if ins.kind == 'begin': saved = [[a, b] for a, b in hist]
            elif ins.kind == 'end':
                d = {id(a): [a, b] for a, b in hist}
                for a, b in saved:
                    if id(a) in d: d[id(a)][1] = min(d[id(a)][1], b)
                    else: d[id(a)] = [a, b]
                hist = list(d.values())
            continue
        if ins.kind == 'label': out.append(ins); continue
        lack = max([_need(p, ins) - age for p, age in hist], default=0)
        if lack > 0:
            out.append(I(f's_nop {lack - 1}'))
            for h in hist: h[1] += lack
        out.append(ins)
        step = ins.arg + 1 if ins.kind == 'nop' else 1
        for h in hist: h[1] += step
        hist = [h for h in hist if h[1] < 20]
        hist.append([ins, 0])
    return out

def finish(code):
    code = insert_nops(insert_waits(code))
    lines = []
    for ins in code:
        lines.append(ins.text if ins.kind == 'label' else '    ' + ins.text)
    return '\n'.join(lines)

def kernel(name, body, vgpr=256, sgpr=102):
    accum = min(256, (vgpr + 3) // 4 * 4)
    return f'''.globl {name}
.p2align 8
.type {name},@function
{name}:
{body}
.section .rodata,"a"
.p2align 6
.amdhsa_kernel {name}
  .amdhsa_next_free_vgpr {vgpr}
  .amdhsa_next_free_sgpr {sgpr}
  .amdhsa_accum_offset {accum}
  .amdhsa_group_segment_fixed_size 0
  .amdhsa_kernarg_size 88
  .amdhsa_user_sgpr_count 2
  .amdhsa_user_sgpr_kernarg_segment_ptr 1
  .amdhsa_system_sgpr_workgroup_id_x 1
.end_amdhsa_kernel
.text
'''
```

```python
from asmlib import *
import struct, math

def f2u(x): return struct.unpack('<I', struct.pack('<f', x))[0]
def hx(x): return '0x%08x' % (x & 0xffffffff)
LOG2E = 1.4426950408889634
GK0 = -2.0 * math.sqrt(2.0 / math.pi) * LOG2E
GK1 = GK0 * 0.044715

HB = 0
EB = 0xA00000
KP = 0xE00000
KF = 0x1000000
CNT = 0x1010000
WS_END = 0x1012000
OOB = 0x7ff00000
import os
PROF = int(os.environ.get('PROF', '0'))
PRB = 0x1100000
CODEPF = int(os.environ.get('CODEPF', '1'))
W2PF = int(os.environ.get('W2PF', '1'))
if PROF: WS_END = 0x1200000
ST = 'sc0 sc1'

SX = 28; SW = [[32, 36], [40, 44], [48, 52]]; SWS = 56; SDBG = 60; SPHI = 64
sW, sB, sG, sI, sJ, sT, sROT, sM0 = 68, 69, 70, 71, 72, 73, 74, 75
sKA = 76; sXO = 76; sKB = 83
sH = [97, 98, 99]
sTMP = 26; sTMP2 = 27; sHI = 100
sE = 90; sKPW = 91; sKPR = 92; sKFW = 93
def srd(n): return f's[{n}:{n+3}]'

vL16 = 1; vDA = [2, 3]; vDB = [4, 5]; vPDU = 6; vPX = 7; vC = [8, 9]; vK0 = 10; vXA = 11
vSW = 15; vSA = 16; vSB = 17; vPHI = 18; vT = 26; WF = 56; ACC = [80, 112]; XF = 144
vAT = 52
vC1 = 11; vSD2 = 12; vRL = 13; vSD = 14
vLS = 44
STAT = 110592
SCR = 49152
def vr(a, n): return f'v[{a}:{a+n-1}]'

def mk_srd(c, d, plo, off_sgpr, size):
    if off_sgpr is None:
        c(f's_mov_b32 s{d}, s{plo}\ns_mov_b32 s{d+1}, s{plo+1}\ns_mov_b32 s{d+2}, {size}')
    else:
        c(f's_add_u32 s{d}, s{plo}, s{off_sgpr}\ns_addc_u32 s{d+1}, s{plo+1}, 0\ns_sub_u32 s{d+2}, {size}, s{off_sgpr}')
    c(f's_mov_b32 s{d+3}, 0x20000')

STR = [4, 12, 20, 94, 6, 8, 14, 16, 22, 24]
def stamp(c, k):
    if PROF: c(f's_memtime s[{STR[k]}:{STR[k]+1}]')

def prof_out(c, n, base, vstart, vreal, sw, sws, T):
    if not PROF: return
    c(f's_waitcnt vmcnt(0)')
    stamp(c, n - 1)
    c(f's_memrealtime s[{STR[n]}:{STR[n]+1}]\ns_waitcnt lgkmcnt(0)')
    c(f's_lshl_b32 s3, s2, 3\ns_add_u32 s3, s3, s{sw}\ns_lshl_b32 s3, s3, 6\ns_add_u32 s3, s3, {base}')
    c(f'v_mov_b32 v{T}, 0')
    c(f'buffer_store_dword v{vstart}, v{T}, {srd(sws)}, s3 offen')
    c(f'buffer_store_dword v{vreal}, v{T}, {srd(sws)}, s3 offen offset:4')
    for k in range(n + 1):
        c(f'v_mov_b32 v{T+1+k}, s{STR[k]}')
        c(f'buffer_store_dword v{T+1+k}, v{T}, {srd(sws)}, s3 offen offset:{8+4*k}')


STEPS = {
    'F': [dict(parts=2, qkv=False, pat=vPDU, dparts=2), dict(parts=2, qkv=False, pat=vPDU, dparts=2), dict(parts=1, qkv=False, pat=vPX, dparts=2)],
    'H': [dict(parts=1, qkv=True, pat=vPX, dparts=1), dict(parts=2, qkv=True, pat=vPX, dparts=2), dict(parts=2, qkv=False, pat=vPDU, dparts=2)],
}

def dma_off(c, qkv, L, T):
    D = vDB if qkv else vDA
    c(f'''
    v_lshrrev_b32 v{T}, 3, v0
    v_bfe_u32 v{T+1}, v{L}, 4, 1
    v_and_b32 v{T+2}, 7, v{L}
    v_lshlrev_b32 v{T+1}, 2, v{T+1}
    v_xor_b32 v{T+1}, v{T+1}, v{T+2}
    v_xor_b32 v{T+2}, 2, v{T+1}
    v_mul_u32_u24 v{T}, {2688 if qkv else 3584}, v{T}
    ''')
    if qkv: c(f'v_min_u32 v{T+1}, 6, v{T+1}\nv_min_u32 v{T+2}, 6, v{T+2}')
    c(f'v_lshl_add_u32 v{D[0]}, v{T+1}, 4, v{T}\nv_lshl_add_u32 v{D[1]}, v{T+2}, 4, v{T}')

def tr_pat(c, kind, L, T):
    c(f'''
    v_lshrrev_b32 v{T}, 5, v{L}
    v_bfe_u32 v{T+1}, v{L}, 2, 2
    v_lshl_add_u32 v{T}, v{T}, 3, v{T+1}
    v_and_b32 v{T+1}, 3, v{L}
    v_lshlrev_b32 v{T+1}, 3, v{T+1}
    v_bfe_u32 v{T+2}, v{L}, 4, 1
    v_bfe_u32 v{T+3}, v{L}, 3, 1
    v_lshlrev_b32 v{T+3}, 6, v{T+3}
    ''')
    if kind in ('du', 'head'):
        c(f'''
        v_lshl_add_u32 v{T+1}, v{T+2}, 5, v{T+1}
        s_mul_i32 s{sTMP}, s{sG}, {64 if kind == 'du' else 56}
        v_add_u32 v{T+1}, s{sTMP}, v{T+1}
        v_xor_b32 v{T+1}, v{T+1}, v{T+3}
        v_lshl_add_u32 v{vPDU if kind == 'du' else vPX}, v{T}, 7, v{T+1}
        ''')
    else:
        c(f'''
        s_and_b32 s{sTMP}, s{sJ}, 1
        s_lshl_b32 s{sTMP}, s{sTMP}, 6
        s_lshl_b32 s{sTMP2}, s{sG}, 5
        s_add_u32 s{sTMP}, s{sTMP}, s{sTMP2}
        v_add_u32 v{T+1}, s{sTMP}, v{T+1}
        v_xor_b32 v{T+1}, v{T+1}, v{T+3}
        v_lshlrev_b32 v{T+3}, 5, v{T+2}
        v_xor_b32 v{T+1}, v{T+1}, v{T+3}
        v_lshl_add_u32 v{T+1}, v{T+2}, 13, v{T+1}
        v_lshl_add_u32 v{vPX}, v{T}, 7, v{T+1}
        ''')

def prologue(c, typ):
    c(f'''
    v_lshrrev_b32 v26, 6, v0
    v_and_b32 v27, 63, v0
    v_readfirstlane_b32 s{sW}, v26
    s_and_b32 s{sTMP}, s2, 7
    s_lshr_b32 s{sTMP2}, s2, 3
    s_lshr_b32 s{sROT}, s{sTMP}, 1
    s_lshr_b32 s{sT}, s{sTMP2}, 3
    s_lshl_b32 s{sI}, s{sROT}, 2
    s_add_u32 s{sI}, s{sI}, s{sT}
    s_lshl_b32 s{sT}, s{sT}, 1
    s_add_u32 s{sROT}, s{sROT}, s{sT}
    s_and_b32 s{sJ}, s{sTMP}, 1
    s_lshl_b32 s{sJ}, s{sJ}, 2
    s_and_b32 s{sT}, s{sTMP2}, 3
    s_add_u32 s{sJ}, s{sJ}, s{sT}
    s_lshl_b32 s{sT}, s{sTMP2}, 1
    s_add_u32 s{sT}, s{sT}, s{sW}
    s_and_b32 s{sT}, s{sT}, 15
    s_lshl_b32 s{sT}, s{sT}, 3
    s_lshl_b32 s{sTMP}, s{sROT}, 7
    ''')
    for q in range(7):
        prev = sTMP if q == 0 else sXO + q - 1
        if q: c(f's_add_u32 s{sTMP}, s{prev}, 128')
        c(f'''
        s_cmp_ge_u32 s{sTMP}, 896
        s_cselect_b32 s{sTMP2}, 896, 0
        s_sub_u32 s{sXO+q}, s{sTMP}, s{sTMP2}
        ''')
    st0 = STEPS[typ][0]
    c(f'''
    v_lshrrev_b32 v30, 3, v27
    v_and_b32 v31, 7, v27
    v_add_u32 v32, s{sT}, v30
    v_xor_b32 v33, 64, v32
    v_mul_u32_u24 v28, 896, v32
    v_mul_u32_u24 v29, 896, v33
    v_lshl_add_u32 v28, v31, 4, v28
    v_lshl_add_u32 v29, v31, 4, v29
    s_lshl_b32 s{sM0}, s{sW}, 10
    ''')
    dma_off(c, st0['qkv'], 27, 34)
    if typ == 'F':
        c(f'''
        s_mul_i32 s{sH[0]}, s{sJ}, 160
        s_and_b32 s{sTMP}, s{sJ}, 1
        s_lshl_b32 s{sTMP}, s{sTMP}, 5
        s_add_u32 s{sH[0]}, s{sH[0]}, s{sTMP}
        s_add_u32 s{sH[0]}, s{sH[0]}, 512
        s_lshl_b32 s{sTMP2}, s{sH[0]}, 1
        s_mul_i32 s{sKB}, s{sXO}, 1792
        ''')
    else:
        c(f's_mul_i32 s{sH[0]}, s{sJ}, 112\ns_add_u32 s{sTMP2}, s{sH[0]}, 896')
        for q in range(2): c(f's_mul_i32 s{sKB+q}, s{sXO+q}, 1344')
    c(f's_mul_i32 s{sTMP}, s{sI}, 114688\ns_waitcnt lgkmcnt(0)')
    if PROF: c('v_mov_b32 v50, s66\nv_mov_b32 v51, s92')
    init = [(s, slot, part) for s, slot in CFG[typ]['init'].items() for part in range(st0['dparts'])]
    if typ == 'F':
        mk_srd(c, SW[0][0], 14, sTMP2, 448 * 3584)
        mk_srd(c, SW[0][1], 16, sTMP2, 448 * 3584)
    else:
        mk_srd(c, SW[0][0], 6, sTMP2, 448 * 2688)
    for s, slot, part in init[:2]: dma(c, typ, s, slot, part, so=sKB + s)
    mk_srd(c, SX, 4, sTMP, 2048 * 896)
    def xloads(g):
        for q in range(7):
            c(f'buffer_load_dwordx4 {vr(80 + 28*g + 4*q, 4)}, v{28+g}, {srd(SX)}, s{sXO+q} offen')
    xloads(0)
    if CODEPF:
        c(f'''
        s_getpc_b64 s[{SPHI}:{SPHI+1}]
        K1_PC{typ}:
        s_sub_u32 s{SPHI}, s{SPHI}, K1_PC{typ}-hh_k1_kernel
        s_subb_u32 s{SPHI+1}, s{SPHI+1}, 0
        s_mov_b32 s{SPHI+2}, K2_EXIT-hh_k1_kernel
        s_mov_b32 s{SPHI+3}, 0x20000
        s_lshr_b32 s{sTMP}, s2, 3
        s_lshl_b32 s{sTMP}, s{sTMP}, 10
        v_lshlrev_b32 v34, 7, v0
        v_lshrrev_b32 v35, 3, v0
        v_lshl_add_u32 v34, v35, 20, v34
        buffer_load_dword v136, v34, {srd(SPHI)}, s{sTMP} offen
        ''')
    c(f's_and_b32 s{sB}, s{sW}, 3\ns_lshr_b32 s{sG}, s{sW}, 2')
    tr_pat(c, 'du' if typ == 'F' else 'head', 27, 34)
    c(f'''
    v_and_b32 v34, 31, v27
    s_lshl_b32 s{sTMP}, s{sB}, 5
    v_add_u32 v34, s{sTMP}, v34
    v_bfe_u32 v35, v27, 1, 3
    v_lshrrev_b32 v36, 5, v27
    v_xor_b32 v35, v35, v36
    v_lshlrev_b32 v35, 4, v35
    v_lshl_add_u32 v{vXA}, v34, 7, v35
    v_xor_b32 v{vXA+1}, 32, v{vXA}
    v_xor_b32 v{vXA+2}, 64, v{vXA}
    v_xor_b32 v{vXA+3}, 96, v{vXA}
    ''')
    if typ == 'H':
        c(f's_add_u32 s{sTMP2}, s{sH[0]}, 1792')
        mk_srd(c, SW[1][0], 6, sTMP2, 448 * 2688)
        mk_srd(c, SW[1][1], 6, sH[0], 448 * 2688)
        for q in range(2, 7): c(f's_mul_i32 s{sKB+q}, s{sXO+q}, 1344')
    c(f'''
    v_mov_b32 v56, 0x3f803f80
    v_mov_b32 v57, 0x3f803f80
    v_and_b32 v34, 1, v27
    v_lshlrev_b32 v35, 4, v34
    v_mov_b32 v36, 0x3f80
    v_lshlrev_b32 v36, v35, v36
    v_and_b32 v35, 2, v27
    v_cmp_eq_u32 s[62:63], 0, v35
    v_cmp_eq_u32 s[60:61], 0, v34
    v_cndmask_b32 v58, 0, v36, s[62:63]
    v_cndmask_b32 v59, v36, 0, s[62:63]
    v_bfe_u32 v36, v32, 1, 3
    v_xor_b32 v36, v36, v31
    v_lshlrev_b32 v36, 4, v36
    v_lshl_add_u32 v40, v32, 7, v36
    v_add_u32 v41, 0x10000, v40
    v_xor_b32 v42, 0x2000, v40
    v_xor_b32 v43, 0x2000, v41
    v_lshlrev_b32 v{vLS+2}, 2, v32
    v_add_u32 v{vLS+2}, {STAT}, v{vLS+2}
    ''')
    xloads(1)
    for q in range(7): c(f's_mul_i32 s{sKA+q}, s{sXO+q}, 1792')
    return init[2:]

def late_setup(c, typ):
    T = vT + 1; L = vT
    c(f'v_and_b32 v{L}, 63, v0')
    if typ == 'F':
        c(f'''
        s_add_u32 s{sH[1]}, s{sH[0]}, 64
        s_lshl_b32 s{sTMP2}, s{sH[1]}, 1
        ''')
        mk_srd(c, SW[1][0], 14, sTMP2, 448 * 3584)
        mk_srd(c, SW[1][1], 16, sTMP2, 448 * 3584)
        c.p(DONE('srd1'))
        c(f'''
        s_and_b32 s{sTMP}, s{sJ}, 1
        s_mul_i32 s{sTMP2}, s{sTMP}, 192
        s_add_u32 s{sH[2]}, s{sH[0]}, 128
        s_sub_u32 s{sH[2]}, s{sH[2]}, s{sTMP2}
        s_lshl_b32 s{sTMP2}, s{sH[2]}, 1
        ''')
        mk_srd(c, SW[2][0], 14, sTMP2, 448 * 3584)
        mk_srd(c, SW[2][1], 16, sTMP2, 448 * 3584)
        c.p(DONE('srd2'))
        c(f's_lshl_b32 s{sTMP}, s{sTMP}, 5\ns_add_u32 s{sH[2]}, s{sH[2]}, s{sTMP}')
        tr_pat(c, 'half', L, T)
    else:
        c(f's_mov_b32 s{sHI}, 0\ns_mov_b32 s{sHI+1}, -1')
        c(f'''
        s_lshl_b32 s3, s{sJ}, 1
        s_add_u32 s3, s3, s{sG}
        s_mul_i32 s{sTMP}, s3, 1568
        ''')
        mk_srd(c, SPHI, 8, sTMP, 16 * 1568)
        phi_gather(c)
        c(f'v_and_b32 v{L}, 63, v0')
        c(f's_lshl_b32 s{sH[2]}, s{sJ}, 6\ns_lshl_b32 s{sTMP2}, s{sJ}, 7')
        mk_srd(c, SW[2][0], 14, sTMP2, 448 * 3584)
        mk_srd(c, SW[2][1], 16, sTMP2, 448 * 3584)
        dma_off(c, False, L, T)
        c.p(DONE('srd2'))
        tr_pat(c, 'du', L, T)
    mk_srd(c, SWS, 24, None, WS_END)
    c(f'''
    v_lshlrev_b32 v{vL16}, 4, v{L}
    s_lshl_b32 s{sTMP}, s{sI}, 2
    s_add_u32 s{sTMP}, s{sTMP}, s{sB}
    s_mul_i32 s{sTMP2}, s{sTMP}, {144*1024}
    ''')
    for step in ([0, 1, 2] if typ == 'F' else [2]):
        c(f'''
        s_lshl_b32 s{sH[step]}, s{sH[step]}, 6
        s_add_u32 s{sH[step]}, s{sH[step]}, s{sTMP2}
        s_lshl_b32 s{sT}, s{sG}, {11 if STEPS[typ][step]['parts'] == 2 else 10}
        s_add_u32 s{sH[step]}, s{sH[step]}, s{sT}
        ''')
    c(f'''
    s_and_b32 s{sT}, s2, 63
    s_lshl_b32 s{sT}, s{sT}, 7
    s_add_u32 s{sT}, s{sT}, {CNT}
    v_mov_b32 v{T}, s{sT}
    v_mov_b32 v{T+1}, {hx(OOB)}
    v_cmp_eq_u32 vcc, 0, v0
    v_cndmask_b32 v{T}, v{T+1}, v{T}, vcc
    v_mov_b32 v{T+2}, 0
    buffer_store_dword v{T+2}, v{T}, {srd(SWS)}, 0 offen {ST}
    ''')
    if typ == 'H':
        mk_srd(c, SDBG, 22, None, 256)
        c(f'''
        s_lshl_b32 s{sT}, s{sJ}, 5
        v_mov_b32 v{vAT+1}, s{sT}
        v_cndmask_b32 v{vAT+1}, v{T+1}, v{vAT+1}, vcc
        v_mov_b32 v{vAT}, 1
        s_lshl_b32 s{sE}, s{sTMP}, 4
        s_add_u32 s{sE}, s{sE}, s3
        s_lshl_b32 s{sE}, s{sE}, 12
        s_add_u32 s{sE}, s{sE}, {EB}
        s_lshl_b32 s{sKPR}, s3, 2
        s_add_u32 s{sKPR}, s{sKPR}, s{sB}
        s_lshl_b32 s{sKPR}, s{sKPR}, 15
        s_add_u32 s{sKPR}, s{sKPR}, {KP}
        s_lshl_b32 s{sTMP}, s{sI}, 11
        s_add_u32 s{sKPW}, s{sKPR}, s{sTMP}
        s_lshl_b32 s{sTMP}, s{sI}, 7
        s_add_u32 s{sKPR}, s{sKPR}, s{sTMP}
        s_lshl_b32 s{sKFW}, s3, 1
        s_and_b32 s{sTMP}, s{sB}, 1
        s_add_u32 s{sKFW}, s{sKFW}, s{sTMP}
        s_lshl_b32 s{sKFW}, s{sKFW}, 1
        s_lshr_b32 s{sTMP}, s{sI}, 3
        s_add_u32 s{sKFW}, s{sKFW}, s{sTMP}
        s_lshl_b32 s{sKFW}, s{sKFW}, 10
        s_lshr_b32 s{sTMP}, s{sB}, 1
        s_lshl_b32 s{sTMP}, s{sTMP}, 8
        s_add_u32 s{sKFW}, s{sKFW}, s{sTMP}
        s_and_b32 s{sTMP}, s{sI}, 1
        s_lshl_b32 s{sTMP}, s{sTMP}, 7
        s_add_u32 s{sKFW}, s{sKFW}, s{sTMP}
        s_bfe_u32 s{sTMP}, s{sI}, 0x10001
        s_lshl_b32 s{sTMP}, s{sTMP}, 9
        s_add_u32 s{sKFW}, s{sKFW}, s{sTMP}
        s_bfe_u32 s{sTMP}, s{sI}, 0x10002
        s_lshl_b32 s{sTMP}, s{sTMP}, 3
        s_add_u32 s{sKFW}, s{sKFW}, s{sTMP}
        s_add_u32 s{sKFW}, s{sKFW}, {KF}
        ''')
        c(f'''
        s_mul_i32 s{sTMP}, s{sG}, 29696
        s_add_u32 s{sTMP}, s{sTMP}, {SCR}
        s_lshl_b32 s{sTMP2}, s{sB}, 5
        v_and_b32 v{T}, 31, v{L}
        v_add_u32 v{T}, s{sTMP2}, v{T}
        v_mul_u32_u24 v{T}, 232, v{T}
        v_lshrrev_b32 v{T+1}, 5, v{L}
        v_lshl_add_u32 v{T}, v{T+1}, 3, v{T}
        v_add_u32 v{vSW}, s{sTMP}, v{T}
        v_bfe_u32 v{T}, v{L}, 2, 3
        v_lshlrev_b32 v{T}, 2, v{T}
        v_lshl_add_u32 v{T}, v{T+1}, 1, v{T}
        v_mul_u32_u24 v{T}, 232, v{T}
        v_and_b32 v{T+1}, 3, v{L}
        v_lshl_add_u32 v{T}, v{T+1}, 3, v{T}
        v_add_u32 v{T}, s{sTMP}, v{T}
        s_and_b32 s{sTMP}, s{sB}, 1
        s_lshl_b32 s{sTMP}, s{sTMP}, 6
        v_add_u32 v{vSA}, s{sTMP}, v{T}
        s_lshr_b32 s{sTMP}, s{sB}, 1
        s_lshl_b32 s{sTMP}, s{sTMP}, 5
        s_add_u32 s{sTMP}, s{sTMP}, 128
        v_add_u32 v{vSB}, s{sTMP}, v{T}
        ''')
        phi_combine(c)

def layernorm(c, mid):
    M4 = 'v_mfma_f32_4x4x4_16b_bf16'
    SA = [60, 64]; QA = [68, 72]; CM = 76; DT = [136, 140, 26, 36]
    inv = hx(f2u(1.0 / 448))
    for g in range(2):
        R = 80 + 28 * g
        for d in range(14):
            if d == 1 and g == 0: stamp(c, 0)
            if d == 13 and g == 1: stamp(c, 1)
            a = d & 1
            c(f'{M4} {vr(SA[a],4)}, v[56:57], {vr(R+2*d,2)}, ' + ('0' if d < 2 else vr(SA[a], 4)))
            c(f'{M4} {vr(QA[a],4)}, {vr(R+2*d,2)}, {vr(R+2*d,2)}, ' + ('0' if d < 2 else vr(QA[a], 4)))
        S = SA[0]; Q = QA[0]
        c(f'v_add_f32 v{S}, v{S}, v{SA[1]}')
        for k in range(4): c(f'v_add_f32 v{Q+k}, v{Q+k}, v{QA[1]+k}')
        c(f'v_add_f32_dpp v{S}, v{S}, v{S} quad_perm:[1,0,3,2] row_mask:0xf bank_mask:0xf')
        c(f'v_cndmask_b32 v{Q}, v{Q+1}, v{Q}, s[60:61]\nv_cndmask_b32 v{Q+2}, v{Q+3}, v{Q+2}, s[60:61]')
        c(f'v_add_f32_dpp v{S}, v{S}, v{S} quad_perm:[2,3,0,1] row_mask:0xf bank_mask:0xf')
        c(f'v_cndmask_b32 v{Q}, v{Q+2}, v{Q}, s[62:63]')
        c(f'v_add_f32_dpp v{S}, v{S}, v{S} row_half_mirror row_mask:0xf bank_mask:0xf')
        c(f'''
        v_mul_f32 v{S}, {hx(f2u(-1.0 / 448))}, v{S}
        v_cvt_pk_bf16_f32 v{S+1}, v{S}, v{S}
        v_and_b32 v{CM}, 0xffff0000, v{S+1}
        v_and_b32 v{CM+1}, 0xffff0000, v{S+1}
        v_and_b32 v{CM+2}, 0xffff0000, v{S+1}
        v_and_b32 v{CM+3}, 0xffff0000, v{S+1}
        ''')
        def cen(d): c(f'{M4} {vr(DT[d&3],4)}, v[58:59], {vr(R+2*d,2)}, {vr(CM,4)}')
        cen(0); cen(1)
        var = Stream()
        for dpp in ('quad_perm:[1,0,3,2]', 'quad_perm:[2,3,0,1]', 'row_half_mirror'):
            var(f'v_add_f32_dpp v{Q}, v{Q}, v{Q} {dpp} row_mask:0xf bank_mask:0xf')
        var(f'''
        v_mul_f32 v{Q}, {inv}, v{Q}
        v_fma_f32 v{Q}, -v{S}, v{S}, v{Q}
        v_max_f32 v{Q}, 0, v{Q}
        v_cvt_pk_bf16_f32 v{Q}, v{Q}, v{Q}
        v_and_b32 v{Q}, 0xffff0000, v{Q}
        v_add_f32 v{Q}, {hx(f2u(1e-5))}, v{Q}
        v_cvt_pk_bf16_f32 v{Q}, v{Q}, v{Q}
        v_and_b32 v{Q}, 0xffff0000, v{Q}
        v_sqrt_f32 v{Q}, v{Q}
        v_cvt_pk_bf16_f32 v{Q}, v{Q}, v{Q}
        v_and_b32 v{vLS+g}, 0xffff0000, v{Q}
        ''')
        for d in range(14):
            if d + 2 < 14: cen(d + 2)
            t = DT[d & 3]
            c(f'v_cvt_pk_bf16_f32 v{R+2*d}, v{t}, v{t+1}\nv_cvt_pk_bf16_f32 v{R+2*d+1}, v{t+2}, v{t+3}')
            if d & 1:
                q = d >> 1
                a, off = (40 + 2 * g, q * 16384) if q < 4 else (41 + 2 * g, (q - 4) * 16384)
                c(f'ds_write_b128 v{a}, {vr(R+4*q, 4)} offset:{off}')
        c += var
        if g == 0: mid()

def stat_put(f):
    f.p(SYNC('xdone'))
    f(f'ds_write_b32 v{vLS+2}, v{vLS}', tag='st')
    f(f'v_xor_b32 v{vLS+2}, 256, v{vLS+2}')
    f(f'ds_write_b32 v{vLS+2}, v{vLS+1}', tag='st')
    f.p(DONE('st'))

def stat_get(f):
    f(f'''
    v_and_b32 v{vC1}, 31, v0
    s_lshl_b32 s{sTMP}, s{sB}, 7
    s_add_u32 s{sTMP}, s{sTMP}, {STAT}
    v_lshlrev_b32 v{vC1}, 2, v{vC1}
    v_add_u32 v{vC1}, s{sTMP}, v{vC1}
    ''')
    f.p(SYNC('stbar'))
    f(f'ds_read_b32 v{vSD}, v{vC1}')
    f.p(GAP(1))
    f(f'''
    v_rcp_f32 v{vRL}, v{vSD}
    v_mul_f32 v{vSD2}, v{vSD}, v{vSD}
    v_mul_f32 v{vK0}, {hx(f2u(GK0))}, v{vRL}
    v_mul_f32 v{vC1}, v{vRL}, v{vRL}
    v_mul_f32 v{vC1}, {hx(f2u(0.044715))}, v{vC1}
    v_mul_f32 v{vC1}, v{vK0}, v{vC1}
    v_mul_f32 v{vRL}, {hx(f2u(LOG2E))}, v{vRL}
    ''')

def gelu_epi(G, U, n, out_regs):
    f = Stream()
    for i0 in range(0, n, 4):
        idx = list(range(i0, i0 + 4)); T = [vT + k for k in range(4)]
        for k, i in enumerate(idx): f(f'v_mul_f32 v{T[k]}, v{G+i}, v{G+i}')
        for k, i in enumerate(idx): f(f'v_fma_f32 v{T[k]}, v{T[k]}, v{vC1}, v{vK0}')
        for k, i in enumerate(idx): f(f'v_mul_f32 v{T[k]}, v{G+i}, v{T[k]}')
        for k, i in enumerate(idx):
            f(f'v_exp_f32 v{T[k]}, v{T[k]}')
            f(f'v_mul_f32 v{U+i}, v{G+i}, v{U+i}')
        for k, i in enumerate(idx): f(f'v_fma_f32 v{T[k]}, v{T[k]}, v{vSD2}, v{vSD2}')
        for k, i in enumerate(idx): f(f'v_rcp_f32 v{T[k]}, v{T[k]}')
        for k, i in enumerate(idx): f(f'v_mul_f32 v{U+i}, v{U+i}, v{T[k]}')
        for k in (0, 2): f(f'v_cvt_pk_bf16_f32 v{out_regs + (i0+k)//2}, v{U+i0+k}, v{U+i0+k+1}')
    return f

def gelu_du(acc, step):
    O = vT + 6
    f = Stream()
    g = gelu_epi(acc, acc + 16, 16, O)
    half = len(g) // 2
    f += g[:half]
    f(f'buffer_store_dwordx4 {vr(O, 4)}, v{vL16}, {srd(SWS)}, s{sH[step]} offen {ST}')
    f += g[half:]
    f(f'buffer_store_dwordx4 {vr(O+4, 4)}, v{vL16}, {srd(SWS)}, s{sH[step]} offen offset:1024 {ST}')
    return f

def gelu_half(acc, step):
    O = vT + 6
    f = gelu_epi(acc, acc + 8, 8, O)
    f(f'buffer_store_dwordx4 {vr(O, 4)}, v{vL16}, {srd(SWS)}, s{sH[step]} offen {ST}')
    return f

def phi_front(f, A, gap):
    B = vT + 6
    for k in range(8): f(f'v_cvt_pk_bf16_f32 v{B+k}, v{A+2*k}, v{A+2*k+1}')
    f(f'v_mfma_f32_32x32x16_bf16 {vr(A,16)}, {vr(vPHI,4)}, {vr(B,4)}, 0')
    f(f'v_mfma_f32_32x32x16_bf16 {vr(A,16)}, {vr(vPHI+4,4)}, {vr(B+4,4)}, {vr(A,16)}')

def phi_exp(f, A, EP):
    MX, MN, T0, T1 = vT, vT + 1, vT + 2, vT + 3
    f(f'v_max3_f32 v{MX}, v{A}, v{A+1}, v{A+2}')
    f(f'v_max3_f32 v{MN}, -v{A}, -v{A+1}, -v{A+2}')
    f(f'v_max3_f32 v{T0}, v{A+3}, v{A+4}, v{A+5}')
    f(f'v_max3_f32 v{T1}, -v{A+3}, -v{A+4}, -v{A+5}')
    for k in (6, 10):
        f(f'v_max3_f32 v{MX}, v{MX}, v{A+k}, v{A+k+1}')
        f(f'v_max3_f32 v{MN}, v{MN}, -v{A+k}, -v{A+k+1}')
        f(f'v_max3_f32 v{T0}, v{T0}, v{A+k+2}, v{A+k+3}')
        f(f'v_max3_f32 v{T1}, v{T1}, -v{A+k+2}, -v{A+k+3}')
    f(f'v_max_f32 v{MX}, v{MX}, v{T0}')
    f(f'v_max_f32 v{MN}, v{MN}, v{T1}')
    f(f'v_permlane32_swap_b32 v{MX}, v{MN}')
    f(f'v_max_f32 v{MX}, v{MX}, v{MN}')
    f(f'v_mul_f32 v{MX}, v{vRL}, v{MX}')
    f(f'v_mov_b32 v{MN}, v{MX}')
    f(f'v_permlane32_swap_b32 v{MX}, v{MN}')
    for i0 in range(0, 14, 2):
        for i in (i0, i0 + 1):
            f(f'v_fma_f32 v{EP+i}, v{A+i}, v{vRL}, -v{MX}')
            f(f'v_fma_f32 v{A+i}, -v{A+i}, v{vRL}, -v{MN}')
        for i in (i0, i0 + 1):
            f(f'v_exp_f32 v{EP+i}, v{EP+i}')
            f(f'v_exp_f32 v{A+i}, v{A+i}')

def k_epi():
    f = Stream()
    K = ACC[0]; EP = ACC[0] + 16
    f.p(GAP(2))
    phi_front(f, K, 0)
    f.p(GAP(2))
    phi_exp(f, K, EP)
    S = [vT, vT + 1, vT + 2, vT + 3]
    f(f'v_add_f32 v{S[0]}, v{EP}, v{EP+1}\nv_add_f32 v{S[1]}, v{K}, v{K+1}')
    f(f'v_add_f32 v{S[2]}, v{EP+2}, v{EP+3}\nv_add_f32 v{S[3]}, v{K+2}, v{K+3}')
    for i in range(4, 14, 2):
        f(f'v_add_f32 v{S[0]}, v{S[0]}, v{EP+i}\nv_add_f32 v{S[1]}, v{S[1]}, v{K+i}')
        f(f'v_add_f32 v{S[2]}, v{S[2]}, v{EP+i+1}\nv_add_f32 v{S[3]}, v{S[3]}, v{K+i+1}')
    f(f'v_add_f32 v{S[0]}, v{S[0]}, v{S[2]}\nv_add_f32 v{S[1]}, v{S[1]}, v{S[3]}')
    f(f'v_permlane32_swap_b32 v{S[0]}, v{S[1]}')
    f(f'v_add_f32 v{S[0]}, v{S[0]}, v{S[1]}')
    f(f'v_mul_f32 v{S[0]}, v{S[0]}, v{vSD}')
    f(f'v_rcp_f32 v{S[0]}, v{S[0]}')
    f(f'v_mov_b32 v{S[1]}, v{S[0]}')
    f(f'v_permlane32_swap_b32 v{S[0]}, v{S[1]}')
    PB = vT + 6
    for sgn, src in ((0, EP), (1, K)):
        for j in range(4):
            n = 4 if j < 3 else 2
            for i in range(4 * j, 4 * j + n): f(f'v_mul_f32 v{src+i}, v{src+i}, v{S[sgn]}')
            o = PB + 8 * sgn + 2 * j
            f(f'v_cvt_pk_bf16_f32 v{o}, v{src+4*j}, v{src+4*j+1}')
            if j < 3: f(f'v_cvt_pk_bf16_f32 v{o+1}, v{src+4*j+2}, v{src+4*j+3}')
            else: f(f'v_mov_b32 v{o+1}, 0')
            f(f'ds_write_b64 v{vSW}, {vr(o, 2)} offset:{64*sgn + 16*j}', tag='scr')
    f.p(DONE('kepi'))
    return f

def vq_epi():
    f = Stream()
    V = ACC[1]; Q = ACC[1] + 16
    f.p(GAP(2))
    VB = vT + 14
    for k in range(8): f(f'v_cvt_pk_bf16_f32 v{VB+k}, v{V+2*k}, v{V+2*k+1}')
    f(f'v_lshrrev_b32 v{vT}, 16, v{vSD}')
    f(f'v_cndmask_b32 v{VB+6}, v{VB+6}, v{vT}, s[{sHI}:{sHI+1}]')
    f(f'v_cndmask_b32 v{VB+7}, v{VB+7}, 0, s[{sHI}:{sHI+1}]')
    for j in range(4): f(f'ds_write_b64 v{vSW}, {vr(VB+2*j, 2)} offset:{128 + 16*j}', tag='scr')
    f.p(DONE('scr'))
    phi_front(f, Q, 0)
    f.p(SYNC('scrbar'))
    bufs = [V, vT + 6]
    D = [V + 12, vT + 18]
    def reads(kk):
        b = bufs[kk & 1]
        for rd in range(2):
            f(f'ds_read_b64_tr_b16 {vr(b+2*rd, 2)}, v{vSB} offset:{kk*7424 + rd*232}')
        for mt in range(2):
            for rd in range(2):
                f(f'ds_read_b64_tr_b16 {vr(b+4+4*mt+2*rd, 2)}, v{vSA} offset:{kk*7424 + rd*232 + mt*32}')
    reads(0); reads(1); f.p(GAP(1))
    for kk in range(4):
        b = bufs[kk & 1]
        for mt in range(2):
            f(f'v_mfma_f32_16x16x32_bf16 {vr(D[mt],4)}, {vr(b+4+4*mt,4)}, {vr(b,4)}, ' + ('0' if kk == 0 else vr(D[mt], 4)))
        if kk + 2 < 4: reads(kk + 2)
        f.p(GAP(1))
    for mt in range(2):
        f(f'buffer_store_dwordx4 {vr(D[mt],4)}, v{vL16}, {srd(SWS)}, s{sKPW} offen offset:{1024*mt} {ST}', tag='kp')
    f.p(DONE('kp'))
    EP = V
    phi_exp(f, Q, EP)
    O = vT + 6
    for sgn, src in ((0, EP), (1, Q)):
        for tp in range(2):
            o = O + 8 * sgn + 4 * tp
            for k in range(4):
                i = 8 * tp + 2 * k
                if i < 14: f(f'v_cvt_pk_bf16_f32 v{o+k}, v{src+i}, v{src+i+1}')
                else: f(f'v_mov_b32 v{o+k}, 0')
            f(f'buffer_store_dwordx4 {vr(o,4)}, v{vL16}, {srd(SWS)}, s{sE} offen offset:{(2*sgn+tp)*1024} {ST}')
    R = ACC[1]
    f(f'''
    v_and_b32 v{R+8}, 63, v0
    v_lshrrev_b32 v{R+9}, 3, v{R+8}
    v_and_b32 v{R+10}, 7, v{R+8}
    v_lshlrev_b32 v{R+9}, 11, v{R+9}
    v_lshl_add_u32 v{R+9}, v{R+10}, 4, v{R+9}
    v_add_u32 v{R+11}, 0x4000, v{R+9}
    v_lshrrev_b32 v{R+12}, 4, v{R+8}
    v_lshlrev_b32 v{R+12}, 1, v{R+12}
    v_lshl_add_u32 v{R+12}, v{R+10}, 4, v{R+12}
    v_and_b32 v{R+13}, 8, v{R+8}
    v_lshlrev_b32 v{R+13}, 27, v{R+13}
    v_or_b32 v{R+12}, v{R+12}, v{R+13}
    s_lshr_b32 s{sT}, s{sB}, 1
    s_and_b32 s{sT}, s{sT}, s{sI}
    s_and_b32 s{sT}, s{sT}, 1
    s_cmp_eq_u32 s{sT}, 1
    s_cselect_b32 s{sT}, 5, 99
    ''')
    return f

def dma(c, typ, slab, slot, part, so=None):
    step, q = divmod(slab, 7)
    qkv = STEPS[typ][step]['qkv']
    c(f's_add_u32 m0, s{sM0}, {int(slot*16384) + part*8192}')
    va = (vDB if qkv else vDA)[part]
    if so is None: so = (sKB if qkv else sKA) + q
    c(f'buffer_load_dwordx4 v{va}, {srd(SW[step][part])}, s{so} offen lds', tag=f'W{slab}')

CFG = {
    'F': dict(bars=[0, 1, 2, 3, 4, 5, 7, 10, 13, 17], dgap=2, xrate=0.75, init={0: 7, 1: 8, 2: 9}, reserved={6}, fast=30, stbar=7),
    'H': dict(bars=[0, 2, 4, 6, 7, 8, 10, 12, 14, 15, 17, 19], dgap=2, xrate=1.25, init={0: 7, 1: 7.5, 2: 8, 3: 8.5, 4: 9, 5: 9.5},
              reserved={3, 4, 5, 6}, scrbar=15, kpbar=18, pollu=136, fast=30, stbar=7),
}
PFU = [113, 115, 117, 122, 124]
CFG['H']['bars'] = [0, 2, 4, 6, 7, 8, 10, 12, 14, 15, 16, 18, 20]

def w2_prefetch(c, rnd):
    T = vPHI + 6
    if rnd == 0:
        mk_srd(c, SX, 18, None, 1792 * 896)
        mk_srd(c, SPHI, 10, None, 448 * 896)
        c(f'''
        s_lshr_b32 s{sT}, s2, 6
        s_lshl_b32 s{sT}, s{sT}, 2
        s_bfe_u32 s{sROT}, s2, 0x20003
        s_add_u32 s{sT}, s{sT}, s{sROT}
        s_mul_i32 s{sROT}, s{sT}, {196*128}
        s_mul_i32 s{sT}, s{sT}, {784*128}
        v_and_b32 v{T}, 7, v0
        v_lshrrev_b32 v{T+1}, 3, v0
        v_lshl_add_u32 v{T}, v{T}, 6, v{T+1}
        v_cmp_gt_u32 vcc, 196, v{T}
        v_lshlrev_b32 v{T}, 7, v{T}
        v_mov_b32 v{T+1}, {hx(OOB)}
        v_cndmask_b32 v{T}, v{T+1}, v{T}, vcc
        ''')
    if rnd < 4:
        c(f'buffer_load_dword v{vPHI+rnd}, v{T}, {srd(SX)}, s{sT} offen\ns_add_u32 s{sT}, s{sT}, {196*128}')
    else:
        c(f'buffer_load_dword v{vPHI+rnd}, v{T}, {srd(SPHI)}, s{sROT} offen')

def main_loop(typ, LOOK=4):
    cfg = CFG[typ]; bars = cfg['bars']; S = STEPS[typ]
    uses = []
    for step in range(3):
        for q in range(7):
            for t in range(4):
                for part in range(S[step]['parts']):
                    acc = ACC[step & 1] + 16 * part
                    uses.append((7 * step + q, t, part, step, acc, q == 0 and t == 0, 4 * q + t))
    slot_of = dict(cfg['init'])
    nxt = len(slot_of)
    free = []; freed = 0
    xread = 0; xfreed = 0; xcredit = 0.0
    steps = [Stream(), Stream(), Stream()]
    state = {'c': steps[0], 'xhi': False, 'u': 0, 'pf': False}
    dq = []; issued_at = {k: -99 for k in slot_of}
    def xr(k):
        c = state['c']
        blk = k >> 2
        if blk >= 4 and not state['xhi']:
            for j in range(4): c(f'v_add_u32 v{vXA+j}, 0x10000, v{vXA+j}')
            state['xhi'] = True
        c(f'ds_read_b128 {vr(XF+4*k,4)}, v{vXA+(k&3)} offset:{(blk & 3)*16384}', tag=f'X{blk}')
    def pop_dma():
        slab, part = dq.pop(0)
        if typ == 'F' and slab == 7 and part == 0: state['c'].p(NEED('srd1'))
        if slab == 14 and part == 0 and state['c'] is steps[0]: state['c'].p(NEED('srd2'))
        dma(state['c'], typ, slab, slot_of[slab], part); issued_at[slab] = state['u']
    def barrier(n):
        nonlocal nxt, xfreed, freed
        c = state['c']
        k = bars.index(n); upto = bars[k + 1] if k + 1 < len(bars) else 21
        while dq and dq[0][0] < upto: pop_dma()
        assert nxt >= upto, (typ, n, nxt, upto)
        if os.environ.get('VERB'): print(typ, 'barrier', n, 'u', state['u'], 'ages', [state['u'] - issued_at[m] for m in range(n, upto)])
        tags = [f'W{m}' for m in range(n, upto)]
        nx = xread // 4
        for blk in range(xfreed, nx): tags.append(f'X{blk}')
        if n == 0: c.p(WAITLDS())
        if typ == 'H' and n == cfg['scrbar']: tags.append('scr')
        if typ == 'H' and n == cfg['kpbar']: tags.append('kp')
        if n == cfg['stbar']: tags.append('st')
        c.p(WAITTAG(*tags))
        c('s_barrier')
        if n == 0: stamp(c, 3)
        if typ == 'H' and n == cfg['scrbar']: c.p(MARK('scrbar'))
        if xfreed < 7 and nx == 7: c.p(MARK('xdone'))
        if n == cfg['stbar']: c.p(MARK('stbar'))
        for blk in range(xfreed, nx):
            if blk not in cfg['reserved']: free.append(blk)
        xfreed = nx
        while freed <= n - 2:
            sl = slot_of[freed]
            if not any(int(v) == int(sl) and m > freed for m, v in slot_of.items()): free.append(int(sl))
            freed += 1
        while nxt < 21 and free:
            s = free.pop(0); slot_of[nxt] = s
            for part in range(S[nxt // 7]['dparts']): dq.append((nxt, part))
            nxt += 1
    def newslab(u):
        return uses[u][1] == 0 and uses[u][2] == 0
    def reads(u):
        slab, t, part, step, acc, first, ks = uses[u]
        c = state['c']
        if newslab(u):
            c(f'v_add_u32 v{vC[0]}, {int(slot_of[slab]*16384)}, v{S[step]["pat"]}')
            if S[step]['parts'] == 2: c(f'v_xor_b32 v{vC[1]}, 32, v{vC[0]}')
        b = WF + 4 * (u % 6)
        for rd in range(2):
            c(f'ds_read_b64_tr_b16 {vr(b+2*rd,2)}, v{vC[part]} offset:{part*8192 + t*2048 + rd*512}')
    def isbar(u): return u < len(uses) and newslab(u) and uses[u][0] in bars
    barrier(0)
    for u in range(LOOK):
        reads(u)
        xr(xread); xread += 1
    lastd = -99
    for u in range(len(uses)):
        slab, t, part, step, acc, first, ks = uses[u]
        state['c'] = steps[step]; state['u'] = u
        c = state['c']
        b = WF + 4 * (u % 6)
        bar_now = isbar(u + LOOK)
        if bar_now:
            c.p(WAITREG([('v', r) for r in range(b, b + 4)] + [('v', r) for r in range(XF + 4 * ks, XF + 4 * ks + 4)]))
            barrier(uses[u + LOOK][0])
        elif u + LOOK < len(uses): reads(u + LOOK)
        xcredit += cfg['xrate']
        if not bar_now:
            while xcredit >= 1 and xread < 28:
                xr(xread); xread += 1; xcredit -= 1
        assert step > 0 or xread > ks
        if isbar(u + 1 + LOOK):
            n = uses[u + 1 + LOOK][0]
            if typ == 'H' and n == cfg['scrbar']: c.p(NEED('scr'))
            if typ == 'H' and n == cfg['kpbar']: c.p(NEED('kp'))
            if n == cfg['stbar']: c.p(NEED('st'))
            c.p(NOFILL())
        c(f'v_mfma_f32_32x32x16_bf16 {vr(acc,16)}, {vr(b,4)}, {vr(XF+4*ks,4)}, ' + ('0' if first else vr(acc, 16)))
        if bar_now:
            reads(u + LOOK)
            if typ == 'H' and uses[u + LOOK][0] == cfg['kpbar']:
                c(f'buffer_atomic_add v{vAT}, v{vAT+1}, {srd(SDBG)}, 0 offen sc1')
        elif not isbar(u + 1 + LOOK):
            if dq and u - lastd >= (1 if u < cfg['fast'] else cfg['dgap']):
                pop_dma(); lastd = u
        if typ == 'F' and W2PF and u in PFU: w2_prefetch(c, PFU.index(u))
    return steps

def phi_gather(c):
    T = vT
    c(f'''
    v_and_b32 v{T}, 63, v0
    v_bfe_u32 v{T+1}, v{T}, 3, 2
    v_and_b32 v{T+2}, 3, v{T}
    v_lshl_add_u32 v{T+1}, v{T+1}, 2, v{T+2}
    v_bfe_u32 v{T+2}, v{T}, 2, 1
    v_mad_u32_u24 v{T+1}, v{T+2}, 14, v{T+1}
    v_min_u32 v{T+1}, 27, v{T+1}
    v_lshrrev_b32 v{T+2}, 5, v{T}
    v_mul_u32_u24 v{T+2}, 224, v{T+2}
    v_lshl_add_u32 v{T+1}, v{T+1}, 1, v{T+2}
    v_mov_b32 v{T+3}, {hx(OOB)}
    v_cndmask_b32 v{T+2}, v{T+1}, v{T+3}, s[{sHI}:{sHI+1}]
    ''')
    for tp in range(2):
        for e in range(8):
            d = 16 * tp + 8 * (e >> 2) + (e & 3)
            a = T + 2 if (tp == 1 and e >= 4) else T + 1
            if e & 1: c(f'buffer_load_short_d16_hi v{T+6+4*tp+(e>>1)}, v{a}, {srd(SPHI)}, 0 offen offset:{d*56}')
            else: c(f'buffer_load_ushort v{vPHI+4*tp+(e>>1)}, v{a}, {srd(SPHI)}, 0 offen offset:{d*56}')

def phi_combine(c):
    for k in range(8):
        c(f'v_and_b32 v{vT+6+k}, 0xffff0000, v{vT+6+k}')
        c(f'v_or_b32 v{vPHI+k}, v{vPHI+k}, v{vT+6+k}')

def gen_k1():
    text = []
    top = Stream()
    top(f'''
    s_cmp_ge_u32 s2, 256
    s_cbranch_scc1 K1_EXIT
    s_load_dwordx8 s[4:11], s[0:1], 0
    s_load_dwordx8 s[12:19], s[0:1], 32
    s_load_dwordx4 s[20:23], s[0:1], 64
    s_load_dwordx2 s[24:25], s[0:1], 80
    {'s_memtime s[66:67]' if PROF else ''}
    {'s_memrealtime s[92:93]' if PROF else ''}
    s_bitcmp1_b32 s2, 5
    s_cbranch_scc1 K1_H
    ''')
    tail = ''
    for typ in 'FH':
        c = Stream(top)
        rest = prologue(c, typ)
        def mid():
            for s, slot, part in rest: dma(c, typ, s, slot, part)
        layernorm(c, mid)
        stamp(c, 2)
        steps = main_loop(typ)
        for k in range(3): stamp(steps[k], 4 + k)
        f0 = Stream(); late_setup(f0, typ); stat_put(f0); stat_get(f0)
        if typ == 'F':
            c += interleave(steps[0], f0, 2)
            c += interleave(steps[1], Stream([GAP(2)]) + gelu_du(ACC[0], 0), 3.4)
            c += interleave(steps[2], Stream([GAP(2)]) + gelu_du(ACC[1], 1), 5.5)
            c += gelu_half(ACC[0], 2)
        else:
            c += interleave(steps[0], f0, 5)
            c += interleave(steps[1], k_epi(), 4.3)
            c += interleave(steps[2], vq_epi(), 5)
            R = ACC[1]
            g = gelu_du(ACC[0], 2)
            c(f'buffer_load_dword v{vAT+3}, v{vAT+1}, {srd(SDBG)}, 0 offen sc1')
            cutp = int(len(g) * 0.5)
            c += g[:cutp]
            c(f'''
            v_readfirstlane_b32 s3, v{vAT+3}
            s_cmp_lg_u32 s{sW}, 0
            s_cselect_b32 s3, 16, s3
            s_cmp_lt_u32 s3, 16
            s_cbranch_scc1 K1_SPIN0
            K1_POLLOK:
            s_barrier
            buffer_load_dwordx4 {vr(R,4)}, v{R+9}, {srd(SWS)}, s{sKPR} offen sc1
            buffer_load_dwordx4 {vr(R+4,4)}, v{R+11}, {srd(SWS)}, s{sKPR} offen sc1
            ''')
            c += g[cutp:]
            for k in range(4): c(f'v_add_f32 v{R+k}, v{R+k}, v{R+4+k}')
            for k in range(4): c(f'v_add_f32_dpp v{R+k}, v{R+k}, v{R+k} row_ror:8 row_mask:0xf bank_mask:0xf')
            c(f'''
            v_permlane16_swap_b32 v{R}, v{R+1}
            v_permlane16_swap_b32 v{R+2}, v{R+3}
            v_add_f32 v{R}, v{R}, v{R+1}
            v_add_f32 v{R+2}, v{R+2}, v{R+3}
            v_permlane32_swap_b32 v{R}, v{R+2}
            v_add_f32 v{R}, v{R}, v{R+2}
            v_cmp_eq_u32 vcc, s{sT}, v{R+10}
            v_cndmask_b32 v{R}, v{R}, 1.0, vcc
            v_cvt_pk_bf16_f32 v{R}, v{R}, v{R}
            buffer_store_short v{R}, v{R+12}, {srd(SWS)}, s{sKFW} offen {ST}
            ''')
            tail = f'''
K1_SPIN0:
    s_mov_b32 s{sTMP2}, 0x10000
K1_SPIN:
    s_sleep 4
    buffer_load_dword v{vAT+3}, v{vAT+1}, {srd(SDBG)}, 0 offen sc1
    s_waitcnt vmcnt(0)
    v_readfirstlane_b32 s3, v{vAT+3}
    s_sub_u32 s{sTMP2}, s{sTMP2}, 1
    s_cmp_eq_u32 s{sTMP2}, 0
    s_cbranch_scc1 K1_POLLOK
    s_cmp_lt_u32 s3, 16
    s_cbranch_scc1 K1_SPIN
    s_branch K1_POLLOK'''
        stamp(c, 7)
        prof_out(c, 9, PRB, 50, 51, sW, SWS, 144)
        c('s_endpgm')
        full = finish(c).split('\n')
        idx = next(k for k, l in enumerate(full) if 's_cbranch_scc1 K1_H' in l)
        if typ == 'F': text += full
        else: text += ['K1_H:'] + full[idx + 1:]
    text += [tail, 'K1_EXIT:', '    s_endpgm']
    return '\n'.join(text)
```

```python
from asmlib import *
from k1 import f2u, hx, LOG2E, HB, EB, KF, CNT, WS_END, OOB, ST, srd, vr, mk_srd, PROF, PRB, stamp, prof_out

SXO = 28; SOUT = 32; SWD = 36; SWO = 40; SWS = 44
sW, sG, sRH, sRT, sCT, sTMP, sTMP2, sHB, sM0, sTMP3, sX = 48, 49, 50, 51, 52, 53, 54, 55, 56, 57, 58
sQ = 60
sQH = 70
sHI = 80
sOE, sOK, sOO, sOC = 82, 83, 84, 85
vL16 = 1; vD = 2; vPAT = 3; vC = [4, 5]; vRW = 7; vRR = 8; vXO = 9; vCN = 10; vPL = 11; vT = 12
WF = 24; ACF = 48; ACS = 80; HF = 112
SLOT = 32768
def slot(q): return ((q + 1) % 5) * SLOT
PSTR = 272; PSZ = 64 * PSTR

def otask(c, KA, E, AP, AM, T, O, soo, off):
    c(f'''
    v_mfma_f32_32x32x16_bf16 {vr(AP,16)}, {vr(KA,4)}, {vr(E,4)}, 0
    v_mfma_f32_32x32x16_bf16 {vr(AM,16)}, {vr(KA+8,4)}, {vr(E+8,4)}, 0
    v_mfma_f32_32x32x16_bf16 {vr(AP,16)}, {vr(KA+4,4)}, {vr(E+4,4)}, {vr(AP,16)}
    v_mfma_f32_32x32x16_bf16 {vr(AM,16)}, {vr(KA+12,4)}, {vr(E+12,4)}, {vr(AM,16)}
    v_rcp_f32 v{T}, v{AP+13}
    v_rcp_f32 v{T+1}, v{AM+13}
    v_mov_b32 v{T+2}, {hx(f2u(1e-6))}
    v_fmac_f32 v{T+2}, v{T}, v{AP+12}
    v_fmac_f32 v{T+2}, v{T+1}, v{AM+12}
    v_rcp_f32 v{T+2}, v{T+2}
    v_mul_f32 v{T}, v{T}, v{T+2}
    v_mul_f32 v{T+1}, v{T+1}, v{T+2}
    v_mov_b32 v{T+3}, v{T}
    v_mov_b32 v{T+4}, v{T+1}
    v_permlane32_swap_b32 v{T+3}, v{T}
    v_permlane32_swap_b32 v{T+4}, v{T+1}
    ''')
    for i in range(16): c(f'v_mul_f32 v{AP+i}, v{T}, v{AP+i}')
    for i in range(16): c(f'v_fmac_f32 v{AP+i}, v{T+1}, v{AM+i}')
    for k in range(8): c(f'v_cvt_pk_bf16_f32 v{O+k}, v{AP+2*k}, v{AP+2*k+1}')
    c(f'''
    v_cndmask_b32 v{O+6}, v{O+6}, 0, s[{sHI}:{sHI+1}]
    v_cndmask_b32 v{O+7}, v{O+7}, 0, s[{sHI}:{sHI+1}]
    buffer_store_dwordx4 {vr(O,4)}, v{vL16}, {srd(SWS)}, s{soo} offen {ST}
    buffer_store_dwordx4 {vr(O+4,4)}, v{vL16}, {srd(SWS)}, s{soo} offen offset:1024 {ST}
    ''')

import os
K2ROT = int(os.environ.get('K2ROT', '0'))
K2ORD = os.environ.get('K2ORD', 'W0 h0 | W1 h1 W2 h2').split()
POLLQ = int(os.environ.get('POLLQ', '4'))
def gen_k2(LOOK=4, AHEAD=3):
    top = Stream()
    top(f'''
    s_cmp_ge_u32 s2, 256
    s_cbranch_scc1 K2_EXIT
    s_load_dwordx8 s[4:11], s[0:1], 0
    s_load_dwordx2 s[18:19], s[0:1], 56
    s_load_dwordx2 s[20:21], s[0:1], 64
    s_load_dwordx2 s[24:25], s[0:1], 80
    {'s_memtime s[90:91]' if PROF else ''}
    {'s_memrealtime s[92:93]' if PROF else ''}
    v_lshrrev_b32 v{vT}, 6, v0
    v_and_b32 v0, 63, v0
    v_readfirstlane_b32 s{sW}, v{vT}
    s_and_b32 s{sX}, s2, 7
    s_lshr_b32 s{sTMP2}, s2, 3
    v_lshlrev_b32 v{vL16}, 4, v0
    s_lshr_b32 s{sG}, s{sW}, 1
    s_and_b32 s{sRH}, s{sW}, 1
    s_cmp_ge_u32 s{sTMP2}, 28
    s_cbranch_scc1 K2_O
    ''')
    c = Stream(top)
    c(f'''
    s_mul_i32 s{sRT}, s{sTMP2}, 37
    s_lshr_b32 s{sRT}, s{sRT}, 8
    s_mul_i32 s{sCT}, s{sRT}, 7
    s_sub_u32 s{sCT}, s{sTMP2}, s{sCT}
    s_lshl_b32 s{sTMP3}, s{sX}, 2
    s_add_u32 s{sRT}, s{sRT}, s{sTMP3}
    s_add_u32 s{sTMP3}, s{sTMP3}, s{sG}
    s_lshl_b32 s{sTMP3}, s{sTMP3}, 7
    s_add_u32 s{sTMP3}, s{sTMP3}, {CNT}
    v_mov_b32 v{vCN}, s{sTMP3}
    s_lshl_b32 s{sTMP}, s{sRT}, 1
    s_add_u32 s{sTMP}, s{sTMP}, s{sRH}
    s_mul_i32 s{sHB}, s{sTMP}, {144*1024}
    s_mul_i32 s{sTMP3}, s{sG}, {28*1024}
    s_add_u32 s{sTMP3}, s{sTMP3}, s{sHB}
    s_mul_i32 s3, s{sG}, {448*896}
    ''')
    for q in range(7):
        c(f'''
        {f's_add_u32 s{sTMP}, s{sCT}, {q}' if K2ROT else f's_mov_b32 s{sTMP}, {q}'}
        s_cmp_ge_u32 s{sTMP}, 7
        s_cselect_b32 s{sTMP2}, 7, 0
        s_sub_u32 s{sTMP}, s{sTMP}, s{sTMP2}
        s_mul_i32 s{sQ+q}, s{sTMP}, {64*896}
        s_add_u32 s{sQ+q}, s{sQ+q}, s3
        s_lshl_b32 s{sTMP}, s{sTMP}, 12
        s_add_u32 s{sQH+q}, s{sTMP}, s{sTMP3}
        ''')
    c(f'''
    v_lshrrev_b32 v{vT}, 3, v0
    v_and_b32 v{vT+1}, 7, v0
    v_bfe_u32 v{vT+2}, v0, 4, 1
    v_lshlrev_b32 v{vT+3}, 2, v{vT+2}
    v_xor_b32 v{vT+3}, v{vT+3}, v{vT+1}
    v_mul_u32_u24 v{vT+4}, 896, v{vT}
    v_lshl_add_u32 v{vT+7}, v{vT+3}, 4, v{vT+4}
    s_mul_i32 s{sTMP}, s{sRH}, {32*896}
    v_add_u32 v{vD}, s{sTMP}, v{vT+7}
    s_lshl_b32 s{sM0}, s{sW}, 12
    s_lshl_b32 s{sTMP}, s{sCT}, 7
    s_waitcnt lgkmcnt(0)
    ''')
    mk_srd(c, SWD, 18, sTMP, 1792 * 896)
    mk_srd(c, SWS, 24, None, WS_END)
    def dma_w(q):
        for k in range(4):
            c(f's_add_u32 m0, s{sM0}, {slot(q) + k*1024}')
            c(f's_add_u32 s3, s{sQ+q}, {k*8*896}')
            c(f'buffer_load_dwordx4 v{vD}, {srd(SWD if q < 7 else SWO)}, s3 offen lds', tag=f'W{q}')
    def hload(q):
        for t in range(4):
            c(f'buffer_load_dwordx4 {vr(HF+4*(4*q+t),4)}, v{vL16}, {srd(SWS)}, s{sQH+q} offen offset:{t*1024}' + (' sc1' if q >= 7 else ''))
    def order(lst):
        for o in lst: (dma_w if o[0] == 'W' else hload)(int(o[1:]))
    order(K2ORD[:K2ORD.index('|')])
    mk_srd(c, SWO, 10, sTMP, 448 * 896)
    c(f'''
    s_mul_i32 s{sTMP2}, s{sRT}, {64*896}
    s_add_u32 s{sTMP}, s{sTMP}, s{sTMP2}
    ''')
    mk_srd(c, SXO, 4, sTMP, 2048 * 896)
    mk_srd(c, SOUT, 20, sTMP, 2048 * 896)
    c(f'''
    s_mul_i32 s{sQ+7}, s{sG}, {112*896}
    s_add_u32 s{sQ+8}, s{sQ+7}, {56*896}
    s_lshl_b32 s{sQH+7}, s{sG}, 13
    s_add_u32 s{sQH+7}, s{sQH+7}, s{sHB}
    s_add_u32 s{sQH+7}, s{sQH+7}, {112*1024}
    s_add_u32 s{sQH+8}, s{sQH+7}, 4096
    ''')
    stamp(c, 0)
    c(f'''
    v_lshrrev_b32 v{vT+8}, 5, v0
    v_bfe_u32 v{vT+9}, v0, 2, 2
    v_lshl_add_u32 v{vT+9}, v{vT+8}, 2, v{vT+9}
    v_lshlrev_b32 v{vT+9}, 7, v{vT+9}
    v_and_b32 v{vT+10}, 3, v0
    v_lshlrev_b32 v{vT+10}, 3, v{vT+10}
    v_lshl_add_u32 v{vT+10}, v{vT+2}, 5, v{vT+10}
    v_bfe_u32 v{vT+11}, v0, 3, 1
    v_lshl_add_u32 v{vT+10}, v{vT+11}, 6, v{vT+10}
    v_add_u32 v{vT+9}, v{vT+9}, v{vT+10}
    s_lshl_b32 s{sTMP}, s{sG}, 13
    v_add_u32 v{vPAT}, s{sTMP}, v{vT+9}
    ''')
    c(f'''
    v_and_b32 v{vT+10}, 31, v0
    s_lshl_b32 s{sTMP}, s{sRH}, 5
    v_add_u32 v{vT+10}, s{sTMP}, v{vT+10}
    v_mul_u32_u24 v{vT+10}, {PSTR}, v{vT+10}
    v_lshl_add_u32 v{vT+10}, v{vT+8}, 4, v{vT+10}
    s_mul_i32 s{sTMP}, s{sG}, {PSZ}
    v_add_u32 v{vRW}, s{sTMP}, v{vT+10}
    s_lshl_b32 s{sTMP}, s{sW}, 3
    v_add_u32 v{vT+10}, s{sTMP}, v{vT}
    v_mul_u32_u24 v{vRR}, {PSTR}, v{vT+10}
    v_lshl_add_u32 v{vRR}, v{vT+1}, 5, v{vRR}
    v_mul_u32_u24 v{vXO}, 896, v{vT+10}
    v_lshl_add_u32 v{vXO}, v{vT+1}, 4, v{vXO}
    ''')
    order(K2ORD[K2ORD.index('|') + 1:])
    uses = [(r, cb) for r in range(36) for cb in range(2)]
    XR = WF - 4
    def barrier_for(q):
        c.p(WAITTAG(f'W{q}')); c('s_barrier')
        if q in (0, 2, 4, 6): stamp(c, 1 + q // 2)
        if q == 7: stamp(c, 5)
        n = q + AHEAD
        if n <= 8 and f'W{n}' not in K2ORD: dma_w(n)
        if n <= 6 and f'h{n}' not in K2ORD: hload(n)
        if q == POLLQ:
            c(f'buffer_load_dword v{vPL}, v{vCN}, {srd(SWS)}, 0 offen sc1')
            c(f'buffer_load_dwordx4 {vr(XR,4)}, v{vXO}, {srd(SXO)}, 0 offen')
        if q == POLLQ + 1:
            c(f'''
            v_readfirstlane_b32 s3, v{vPL}
            s_cmp_lt_u32 s3, 8
            s_cbranch_scc1 K2_SPIN0
            K2_POLLOK:
            ''')
            hload(7); hload(8)
        c(f'v_add_u32 v{vC[0]}, {slot(q)}, v{vPAT}')
        c(f'v_xor_b32 v{vC[1]}, 64, v{vC[0]}')
    def reads(u):
        r, cb = uses[u]
        if cb == 0 and r % 4 == 0: barrier_for(r // 4)
        b = WF + 4 * (u % 6)
        for rd in range(2):
            if r < 28: row = 16 * (r % 4) + 8 * rd
            else: row = 28 * ((r % 4) >> 1) + 16 * (r & 1) + 8 * rd
            c(f'ds_read_b64_tr_b16 {vr(b+2*rd,2)}, v{vC[cb]} offset:{row*128}')
    def pwrite(acc):
        for cb in range(2):
            for j in range(4):
                c(f'ds_write_b128 v{vRW}, {vr(acc+16*cb+4*j,4)} offset:{cb*128 + j*32}', tag='pw')
    def pread(dst):
        for p in range(4):
            for k in range(2):
                c(f'ds_read_b128 {vr(dst+8*p+4*k,4)}, v{vRR} offset:{p*PSZ + 16*k}', tag='pr')
    def psum(dst):
        for i in range(8): c(f'v_add_f32 v{dst+i}, v{dst+i}, v{dst+8+i}')
        for i in range(8): c(f'v_add_f32 v{dst+16+i}, v{dst+16+i}, v{dst+24+i}')
        for i in range(8): c(f'v_add_f32 v{dst+i}, v{dst+i}, v{dst+16+i}')
    for u in range(LOOK): reads(u)
    FS = HF
    for u in range(len(uses)):
        r, cb = uses[u]
        if (r, cb) == (28, 0):
            c('s_barrier')
            pwrite(ACF)
            c.p(WAITTAG('pw')); c('s_barrier')
            pread(FS)
            psum(FS)
            for i in range(8): c(f'v_mul_f32 v{FS+8+i}, {hx(f2u(-LOG2E))}, v{FS+i}')
            for i in range(8): c(f'v_exp_f32 v{FS+8+i}, v{FS+8+i}')
            for i in range(8): c(f'v_add_f32 v{FS+8+i}, 1.0, v{FS+8+i}')
            for i in range(8): c(f'v_rcp_f32 v{FS+8+i}, v{FS+8+i}')
            for i in range(8): c(f'v_mul_f32 v{FS+i}, v{FS+i}, v{FS+8+i}')
            for k in range(4):
                c(f'v_lshlrev_b32 v{FS+8+2*k}, 16, v{XR+k}\nv_and_b32 v{FS+9+2*k}, 0xffff0000, v{XR+k}')
        if u + LOOK < len(uses): reads(u + LOOK)
        acc = (ACF if r < 28 else ACS) + 16 * cb
        first = r == 0 or r == 28
        b = WF + 4 * (u % 6)
        c(f'v_mfma_f32_32x32x16_bf16 {vr(acc,16)}, {vr(b,4)}, {vr(HF+4*r,4)}, ' + ('0' if first else vr(acc, 16)))
    stamp(c, 6)
    pwrite(ACS)
    c.p(WAITTAG('pw')); c('s_barrier')
    SS = HF + 32
    pread(SS)
    psum(SS)
    for i in range(8): c(f'v_fmac_f32 v{FS+8+i}, v{SS+i}, v{FS+i}')
    for k in range(4): c(f'v_cvt_pk_bf16_f32 v{XR+k}, v{FS+8+2*k}, v{FS+9+2*k}')
    c(f'buffer_store_dwordx4 {vr(XR,4)}, v{vXO}, {srd(SOUT)}, 0 offen')
    stamp(c, 7)
    if PROF: c('v_mov_b32 v200, s90\nv_mov_b32 v201, s92')
    prof_out(c, 9, PRB + 0x40000, 200, 201, sW, SWS, 210)
    c('s_endpgm')
    text = finish(c)
    text += f'''
K2_SPIN0:
    s_mov_b32 s{sTMP2}, 0x10000
K2_SPIN:
    s_sleep 8
    buffer_load_dword v{vPL}, v{vCN}, {srd(SWS)}, 0 offen sc1
    s_waitcnt vmcnt(0)
    v_readfirstlane_b32 s3, v{vPL}
    s_sub_u32 s{sTMP2}, s{sTMP2}, 1
    s_cmp_eq_u32 s{sTMP2}, 0
    s_cbranch_scc1 K2_POLLOK
    s_cmp_lt_u32 s3, 8
    s_cbranch_scc1 K2_SPIN
    s_branch K2_POLLOK
'''
    c = Stream(top)
    c(f'''
    s_sub_u32 s{sTMP2}, s{sTMP2}, 28
    s_lshl_b32 s{sTMP}, s{sTMP2}, 2
    s_add_u32 s{sTMP}, s{sTMP}, s{sG}
    s_lshl_b32 s{sTMP3}, s{sX}, 3
    s_lshl_b32 s3, s{sRH}, 2
    s_add_u32 s{sTMP3}, s{sTMP3}, s3
    s_lshl_b32 s{sOE}, s{sTMP3}, 4
    s_add_u32 s{sOE}, s{sOE}, s{sTMP}
    s_lshl_b32 s{sOE}, s{sOE}, 12
    s_add_u32 s{sOE}, s{sOE}, {EB}
    s_lshl_b32 s{sOK}, s{sTMP}, 12
    s_add_u32 s{sOK}, s{sOK}, {KF}
    s_mul_i32 s{sOO}, s{sTMP3}, {144*1024}
    s_lshl_b32 s{sTMP}, s{sTMP}, 11
    s_add_u32 s{sOO}, s{sOO}, s{sTMP}
    s_add_u32 s{sOO}, s{sOO}, {HB + 112*1024}
    s_lshl_b32 s{sOC}, s{sX}, 2
    s_add_u32 s{sOC}, s{sOC}, s{sTMP2}
    s_lshl_b32 s{sOC}, s{sOC}, 7
    s_add_u32 s{sOC}, s{sOC}, {CNT}
    s_mov_b32 s{sHI}, 0
    s_mov_b32 s{sHI+1}, -1
    s_waitcnt lgkmcnt(0)
    ''')
    mk_srd(c, SWS, 24, None, WS_END)
    KA = 112; E0 = 128
    for k in range(4):
        c(f'buffer_load_dwordx4 {vr(KA+4*k,4)}, v{vL16}, {srd(SWS)}, s{sOK} offen offset:{1024*k}')
    for t in range(4):
        for k in range(4):
            c(f'buffer_load_dwordx4 {vr(E0+16*t+4*k,4)}, v{vL16}, {srd(SWS)}, s{sOE} offen offset:{1024*k}')
        c(f's_add_u32 s{sOE}, s{sOE}, {16*4096}')
    c(f'''
    v_mov_b32 v{vT+5}, {hx(OOB)}
    v_cmp_eq_u32 vcc, 0, v0
    v_cndmask_b32 v{vT+5}, v{vT+5}, 0, vcc
    v_mov_b32 v{vT+6}, 1
    ''')
    stamp(c, 0)
    for t in range(4):
        otask(c, KA, E0 + 16 * t, 48, 64, vT, 80 + 8 * t, sOO, 0)
        c(f's_add_u32 s{sOO}, s{sOO}, {144*1024}')
        stamp(c, 1 + t)
    c('s_waitcnt vmcnt(0)')
    stamp(c, 5); stamp(c, 6); stamp(c, 7)
    c(f'buffer_atomic_add v{vT+6}, v{vT+5}, {srd(SWS)}, s{sOC} offen sc1')
    if PROF: c('v_mov_b32 v200, s90\nv_mov_b32 v201, s92')
    prof_out(c, 9, PRB + 0x40000, 200, 201, sW, SWS, 210)
    full = finish(c).split('\n')
    idx = next(k for k, l in enumerate(full) if 's_cbranch_scc1 K2_O' in l)
    text += 'K2_O:\n' + '\n'.join(full[idx + 1:]) + '\nK2_EXIT:\n    s_endpgm'
    return text
```

```python
import re

TRANS = ('v_exp_f32', 'v_log_f32', 'v_rcp_f32', 'v_rsq_f32', 'v_sqrt_f32', 'v_sin_f32', 'v_cos_f32')

def _regs(tok):
    tok = tok.strip()
    tok = tok.lstrip('-')
    m = re.fullmatch(r'abs\((.*)\)', tok) or re.fullmatch(r'\|(.*)\|', tok)
    if m: tok = m.group(1)
    m = re.fullmatch(r'([vsa])(\d+)', tok)
    if m: return [(m.group(1), int(m.group(2)))]
    m = re.fullmatch(r'([vsa])\[(\d+):(\d+)\]', tok)
    if m: return [(m.group(1), i) for i in range(int(m.group(2)), int(m.group(3)) + 1)]
    if tok in ('vcc', 'exec', 'm0', 'scc'): return [tok]
    if tok in ('vcc_lo', 'vcc_hi'): return ['vcc']
    if tok in ('exec_lo', 'exec_hi'): return ['exec']
    return []

class I:
    __slots__ = ('text', 'op', 'rd', 'wr', 'kind', 'tag', 'arg', 'ops', 'passes', 'srcc', 'ab', 'cost')
    def __init__(self, text, tag=None):
        self.text = text; self.tag = tag; self.arg = None
        t = text.split(';')[0].strip()
        parts = t.split(None, 1)
        op = parts[0]; self.op = op
        rest = parts[1] if len(parts) > 1 else ''
        ops = []; depth = 0; cur = ''
        for ch in rest:
            if ch in '[(': depth += 1
            if ch in '])': depth -= 1
            if ch == ',' and depth == 0: ops.append(cur.strip()); cur = ''
            else: cur += ch
        if cur.strip(): ops.append(cur.strip())
        mods = ''
        if ops:
            sp = ops[-1].split(None, 1)
            ops[-1] = sp[0]
            if len(sp) > 1: mods = sp[1]
        self.ops = ops
        R = [_regs(o) for o in ops]
        rd = set(); wr = set(); kind = 'other'
        self.passes = 0; self.srcc = (); self.ab = ()
        if op.endswith(':'):
            kind = 'label'
        elif op.startswith('v_mfma'):
            kind = 'mfma'; wr |= set(R[0]); rd |= set(R[1]) | set(R[2]) | set(R[3])
            self.passes = 8 if '32x32' in op else (2 if '4x4x4' in op else 4)
            self.srcc = tuple(R[3]); self.ab = tuple(R[1]) + tuple(R[2])
        elif op.startswith('v_'):
            kind = 'trans' if op.replace('_e32', '').replace('_e64', '') in TRANS else 'valu'
            if op == 'v_nop': pass
            else:
                wr |= set(R[0])
                for r in R[1:]: rd |= set(r)
                if op.startswith(('v_fmac', 'v_dot2c', 'v_pk_fmac')): rd |= set(R[0])
                if op.startswith(('v_permlane32_swap', 'v_permlane16_swap')):
                    rd |= set(R[0]); wr |= set(R[1])
                if op.startswith(('v_add_co', 'v_sub_co', 'v_addc_co', 'v_subb_co', 'v_mad_u64_u32')):
                    wr |= set(R[1]); rd -= set(R[1])
                    if op.startswith(('v_addc', 'v_subb')): rd |= set(R[-1])
                if '_dpp' in op or op.startswith('v_writelane'): rd |= set(R[0])
                if '_sdwa' in op and 'UNUSED_PRESERVE' in mods: rd |= set(R[0])
            rd.add('exec')
        elif op.startswith('ds_'):
            kind = 'ds'
            if op.startswith(('ds_read', 'ds_bpermute', 'ds_permute', 'ds_swizzle')):
                wr |= set(R[0])
                for r in R[1:]: rd |= set(r)
            else:
                for r in R: rd |= set(r)
            rd.add('exec')
        elif op.startswith(('buffer_', 'global_')):
            kind = 'vmem'
            lds = re.search(r'\blds\b', mods) is not None
            if op in ('buffer_wbl2', 'buffer_inv'):
                pass
            elif op.startswith(('buffer_load', 'global_load')) and not lds:
                wr |= set(R[0])
                for r in R[1:]: rd |= set(r)
                if 'd16' in op: rd |= set(R[0])
            elif 'atomic' in op and re.search(r'\bsc0\b', mods):
                wr |= set(R[0])
                for r in R: rd |= set(r)
            else:
                for r in R: rd |= set(r)
                if lds: rd.add('m0')
            rd.add('exec')
        elif op.startswith(('s_load', 's_memtime', 's_memrealtime', 's_buffer_load')):
            kind = 'smem'; wr |= set(R[0])
            for r in R[1:]: rd |= set(r)
        elif op == 's_waitcnt': kind = 'wait'
        elif op == 's_barrier': kind = 'barrier'
        elif op == 's_nop': kind = 'nop'; self.arg = int(ops[0])
        elif op.startswith(('s_cbranch', 's_branch')):
            kind = 'branch'
        elif op in ('s_endpgm', 's_sleep', 's_setprio'): kind = 'salu'
        elif op.startswith('s_'):
            kind = 'salu'
            if op.startswith(('s_cmp', 's_bitcmp')):
                for r in R: rd |= set(r)
            else:
                wr |= set(R[0])
                for r in R[1:]: rd |= set(r)
                if 'saveexec' in op: wr.add('exec'); rd.add('exec')
        self.rd = rd; self.wr = wr; self.kind = kind
        self.cost = {'valu': 1, 'trans': 2, 'mfma': 2, 'salu': 0.5, 'vmem': 0.5, 'ds': 0.5}.get(kind, 0)
        if op.startswith(('s_addc', 's_subb', 's_cselect')): self.cost = 0
        if op.startswith(('v_permlane32_swap', 'v_permlane16_swap')): self.cost = 2
    def __repr__(self): return self.text

class P:
    def __init__(self, kind, arg=None):
        self.kind = kind; self.arg = arg; self.cost = 0
    def __repr__(self): return f'<{self.kind} {self.arg}>'

def WAITTAG(*tags): return P('waittag', tags)
def WAITLDS(): return P('waitlds')
def BEGIN(region): return P('begin', region)
def END(region): return P('end', region)
def GAP(n): return P('gap', n)
def SYNC(name): return P('sync', name)
def MARK(name): return P('mark', name)
def NEED(name): return P('need', name)
def DONE(name): return P('done', name)
def NOFILL(): return P('nofill')
def BUDGET(x): return P('budget', x)
def WAITREG(regs): return P('waitreg', regs)

class Stream(list):
    def __call__(self, text, tag=None):
        for line in text.strip().split('\n'):
            line = line.strip()
            if not line or line.startswith(';'): continue
            self.append(I(line, tag))
        return self
    def p(self, x): self.append(x); return self

def interleave(main, fill, budget, rest=None):
    out = Stream(); fi = 0; gap = 0; marks = set(); credit = 0.0; nofill = False
    def emit_fill(limit, force_until=None):
        nonlocal fi, gap, budget
        spent = 0
        while fi < len(fill):
            f = fill[fi]
            if isinstance(f, P) and f.kind == 'budget':
                budget = f.arg; fi += 1; continue
            if isinstance(f, P) and f.kind == 'gap':
                fi += 1
                if force_until is None:
                    gap = f.arg; return spent
                continue
            if isinstance(f, P) and f.kind == 'sync':
                if f.arg not in marks:
                    assert force_until is None, f'need {force_until} blocked by sync {f.arg}'
                    return spent
                fi += 1; continue
            if isinstance(f, P) and f.kind == 'done':
                marks.add('done:' + f.arg); fi += 1
                if force_until == f.arg: return spent
                continue
            if force_until is None and spent + f.cost > limit and f.cost > 0: return spent
            out.append(f); spent += f.cost; fi += 1
        return spent
    for m in main:
        if isinstance(m, P) and m.kind == 'mark':
            marks.add(m.arg); continue
        if isinstance(m, P) and m.kind == 'need':
            if 'done:' + m.arg not in marks:
                emit_fill(0, force_until=m.arg); gap = 0
            continue
        if isinstance(m, P) and m.kind == 'nofill':
            nofill = True; continue
        out.append(m)
        if isinstance(m, I) and m.kind == 'mfma':
            if gap > 0: gap -= 1; credit = 0.0; nofill = False; continue
            if nofill: nofill = False; continue
            credit += budget
            credit -= emit_fill(credit)
            credit = min(credit, 2.0)
    while fi < len(fill):
        f = fill[fi]
        if isinstance(f, P) and f.kind in ('gap', 'sync', 'done', 'budget'):
            if f.kind == 'sync': assert f.arg in marks, f.arg
            fi += 1; continue
        (out if rest is None else rest).append(f); fi += 1
    return out

class _E:
    __slots__ = ('dst', 'tag', 'region')
    def __init__(self, dst, tag, region): self.dst = dst; self.tag = tag; self.region = region

SPLIT = {}
_lab = [0]
def insert_waits(code):
    out = Stream()
    vm = []; lg = []; region = None; saved = None
    smem_pending = False
    def count_younger(q, idx):
        tr = q[idx].region
        n = sum(1 for e in q[idx + 1:] if e.region is None or e.region == region or (tr is not None and e.region == tr))
        if tr is not None and tr != region and any(e.region != tr for e in q[:idx]):
            n = sum(1 for e in q[idx + 1:] if e.region is None or e.region == region)
        return n
    def do_wait(vi, li):
        nonlocal vm, lg
        parts = []
        extra = None
        if vi is not None:
            n = min(count_younger(vm, vi), 63)
            sp = [e for e in vm[vi + 1:] if e.region in SPLIT and e.region != region]
            if sp and vm[vi].region is None:
                extra = (n, SPLIT[sp[0].region]); n = min(n + len(sp), 63)
            parts.append(f'vmcnt({n})'); vm = vm[vi + 1:]
        if li is not None:
            n = min(count_younger(lg, li), 15); parts.append(f'lgkmcnt({n})'); lg = lg[li + 1:]
        if parts:
            if out and isinstance(out[-1], I) and out[-1].kind == 'wait':
                d = dict(re.findall(r'(\w+)\((\d+)\)', out[-1].text))
                for k, v in re.findall(r'(\w+)\((\d+)\)', ' '.join(parts)):
                    d[k] = str(min(int(v), int(d.get(k, 99))))
                out[-1] = I('s_waitcnt ' + ' '.join(f'{k}({v})' for k, v in d.items()))
            else:
                out.append(I('s_waitcnt ' + ' '.join(parts)))
        if extra:
            _lab[0] += 1
            out.append(I(extra[1])); out.append(I(f's_cbranch_scc0 SPL{_lab[0]}'))
            out.append(BEGIN('spl')); out.append(I(f's_waitcnt vmcnt({extra[0]})')); out.append(END('spl')); out.append(I(f'SPL{_lab[0]}:'))
    for ins in code:
        if isinstance(ins, P):
            if ins.kind == 'waittag':
                vi = max([i for i, e in enumerate(vm) if e.tag in ins.arg], default=None)
                li = max([i for i, e in enumerate(lg) if e.tag in ins.arg], default=None)
                if li is not None and smem_pending:
                    out.append(I('s_waitcnt lgkmcnt(0)')); lg = []; smem_pending = False; li = None
                do_wait(vi, li)
            elif ins.kind == 'waitreg':
                touch = set(ins.arg)
                vi = max([i for i, e in enumerate(vm) if e.dst & touch], default=None)
                li = max([i for i, e in enumerate(lg) if e.dst & touch], default=None)
                if li is not None and smem_pending:
                    out.append(I('s_waitcnt lgkmcnt(0)')); lg = []; smem_pending = False; li = None
                do_wait(vi, li)
            elif ins.kind == 'waitlds':
                if lg: do_wait(None, len(lg) - 1)
            elif ins.kind == 'begin':
                assert region is None; region = ins.arg; saved = (list(vm), list(lg)); out.append(ins)
            elif ins.kind == 'end':
                def merge(pre, now):
                    keep = [e for e in pre if not (e.region == region and e not in now)]
                    return keep + [e for e in now if e not in pre]
                vm = merge(saved[0], vm); lg = merge(saved[1], lg); region = None; out.append(ins)
            else:
                raise ValueError(ins)
            continue
        if ins.kind == 'wait':
            m = re.search(r'vmcnt\((\d+)\)', ins.text)
            if m and int(m.group(1)) == 0: vm = []
            m = re.search(r'lgkmcnt\((\d+)\)', ins.text)
            if m and int(m.group(1)) == 0: lg = []; smem_pending = False
            out.append(ins); continue
        touch = ins.rd | ins.wr
        vi = max([i for i, e in enumerate(vm) if e.dst & touch], default=None)
        li = max([i for i, e in enumerate(lg) if e.dst & touch], default=None)
        if ins.kind == 'vmem' and 'd16' in ins.op and vi is not None and not (vm[vi].dst & (ins.rd - ins.wr)):
            vi = None
        if li is not None and smem_pending:
            out.append(I('s_waitcnt lgkmcnt(0)')); lg = []; smem_pending = False; li = None
        do_wait(vi, li)
        out.append(ins)
        if ins.tag == 'raw': pass
        elif ins.kind == 'vmem': vm.append(_E(set(ins.wr), ins.tag, region))
        elif ins.kind == 'ds': lg.append(_E(set(ins.wr), ins.tag, region))
        elif ins.kind == 'smem': lg.append(_E(set(ins.wr), ins.tag, region)); smem_pending = True
    return out

def _need(p, c):
    n = 0
    pv = p.kind in ('valu', 'trans')
    cv = c.kind in ('valu', 'trans')
    vw = {r for r in p.wr if isinstance(r, tuple) and r[0] in 'va'}
    sw = {r for r in p.wr if (isinstance(r, tuple) and r[0] == 's') or r == 'vcc'}
    if pv:
        if c.kind == 'mfma' and vw & c.rd: n = max(n, 2)
        if p.kind == 'trans' and c.kind in ('valu', 'mfma') and vw & c.rd: n = max(n, 1)
        if p.kind == 'trans' and c.kind == 'trans' and vw & c.rd: n = max(n, 1)
        if cv and (c.op.startswith('v_permlane') or '_dpp' in c.op) and vw & c.rd: n = max(n, 2)
        if cv and c.op.startswith(('v_readlane', 'v_readfirstlane')) and vw & c.rd: n = max(n, 1)
        if cv and sw & c.rd: n = max(n, 4 if c.op.startswith(('v_readlane', 'v_writelane')) else 2)
        if c.kind == 'vmem' and sw & c.rd: n = max(n, 5)
        if c.kind == 'salu' and sw & c.rd: n = max(n, 1)
        if '_sdwa' in p.op and cv and vw & (c.rd | c.wr): n = max(n, 1)
        if p.op.startswith('v_dot') and not (c.op == p.op) and vw & (c.rd | c.wr): n = max(n, 3)
        if p.op.startswith('v_dot') and c.op == p.op and vw & (c.rd - c.wr): n = max(n, 3)
        if 'exec' in p.wr: n = max(n, 5)
    if p.kind == 'mfma':
        big = {8: 12, 4: 8, 2: 5}[p.passes]
        if c.kind == 'mfma':
            if vw & set(c.ab): n = max(n, big)
            if vw & set(c.srcc):
                if not (set(c.srcc) == vw and c.passes == p.passes): n = max(n, max(big - 2, 4))
                elif p.passes == 2: n = max(n, 2)
            elif vw & c.wr: n = max(n, big)
        elif c.kind in ('valu', 'trans', 'vmem', 'ds'):
            if vw & (c.rd | c.wr): n = max(n, big)
            if set(p.srcc) & c.wr: n = max(n, p.passes - 1)
    if p.kind == 'salu' and 'm0' in p.wr and 'm0' in c.rd and c.kind in ('vmem', 'ds'): n = max(n, 1)
    if p.kind == 'vmem' and re.search(r'store_dwordx[34]', p.op):
        data = set(_regs(p.ops[0] if p.op.startswith('buffer') else p.ops[1]))
        if data & c.wr: n = max(n, 2)
    return n

def insert_nops(code):
    out = Stream(); hist = []
    saved = None
    for ins in code:
        if isinstance(ins, P):
            if ins.kind == 'begin': saved = [[a, b] for a, b in hist]
            elif ins.kind == 'end':
                d = {id(a): [a, b] for a, b in hist}
                for a, b in saved:
                    if id(a) in d: d[id(a)][1] = min(d[id(a)][1], b)
                    else: d[id(a)] = [a, b]
                hist = list(d.values())
            continue
        if ins.kind == 'label': out.append(ins); continue
        lack = max([_need(p, ins) - age for p, age in hist], default=0)
        if lack > 0:
            out.append(I(f's_nop {lack - 1}'))
            for h in hist: h[1] += lack
        out.append(ins)
        step = ins.arg + 1 if ins.kind == 'nop' else 1
        for h in hist: h[1] += step
        hist = [h for h in hist if h[1] < 20]
        hist.append([ins, 0])
    return out

def finish(code):
    code = insert_nops(insert_waits(code))
    lines = []
    for ins in code:
        lines.append(ins.text if ins.kind == 'label' else '    ' + ins.text)
    return '\n'.join(lines)

def kernel(name, body, vgpr=256, sgpr=102):
    accum = min(256, (vgpr + 3) // 4 * 4)
    return f'''.globl {name}
.p2align 8
.type {name},@function
{name}:
{body}
.section .rodata,"a"
.p2align 6
.amdhsa_kernel {name}
  .amdhsa_next_free_vgpr {vgpr}
  .amdhsa_next_free_sgpr {sgpr}
  .amdhsa_accum_offset {accum}
  .amdhsa_group_segment_fixed_size 0
  .amdhsa_kernarg_size 88
  .amdhsa_user_sgpr_count 2
  .amdhsa_user_sgpr_kernarg_segment_ptr 1
  .amdhsa_system_sgpr_workgroup_id_x 1
.end_amdhsa_kernel
.text
'''
```

```python
from asmlib import *
import struct, math, os

def f2u(x): return struct.unpack('<I', struct.pack('<f', x))[0]
def hx(x): return '0x%08x' % (x & 0xffffffff)
def env(k, d): return type(d)(os.environ.get(k, d))
LOG2E = 1.4426950408889634
GK0 = -2.0 * math.sqrt(2.0 / math.pi) * LOG2E
KN = 'recurrent_scan__linear_kernel_hedgehog__glu_gated_geglu__prompt_kernel'

HB = 0
KP = 0xA00000
KF = 0xC00000
CNT = 0xC10000
WS_END = 0xC12000
OOB = 0x7ff00000
PROF = env('PROF', 0); PRB = 0x1100000
if PROF: WS_END = 0x1200000
ST = 'sc0 sc1'

SX = 28; SW = [[32, 36], [40, 44], [48, 52]]; SWS = 56; SDBG = 60; SPHI = 64
sW, sB, sG, sI, sJ, sT, sROT, sM0 = 68, 69, 70, 71, 72, 73, 74, 75
sKA = 76; sXO = 76; sKB = 83
sH = [97, 98, 99]
sTMP = 26; sTMP2 = 27; sHI = 100
sO = 90; sKPW = 91; sKPR = 92; sKFW = 93; sKFR = 96
SWD = 32; SWO = 36; SXO = 28; SOUT = 64
sWB = [6, 7, 8, 9]; sHB = [14, 15, 16, 17]; sG2 = 22; sM2 = 23; sCT = 24; sMT = 25; sD = 3
def srd(n): return f's[{n}:{n+3}]'

vL16 = 1; vDA = [2, 3]; vDB = [4, 5]; vPDU = 6; vPX = 7; vC = [8, 9]; vK0 = 10; vXA = 11
vC1 = 11; vSD2 = 12; vRL = 13; vSD = 14
vSW = 15; vSA = 16; vSB = 17; vPHI = 18; vT = 26; WF = 56; ACC = [80, 112]; XF = 144
vLS = 44
vCF = 52
vD2 = 54; vPR = 55; vRQ = 5
SCR = 49152
MISC = 155648
STAT = {'F': 110592, 'H': MISC + 4096}
def vr(a, n): return f'v[{a}:{a+n-1}]'

def mk_srd(c, d, plo, off_sgpr, size):
    if off_sgpr is None:
        c(f's_mov_b32 s{d}, s{plo}\ns_mov_b32 s{d+1}, s{plo+1}\ns_mov_b32 s{d+2}, {size}')
    else:
        c(f's_add_u32 s{d}, s{plo}, s{off_sgpr}\ns_addc_u32 s{d+1}, s{plo+1}, 0\ns_sub_u32 s{d+2}, {size}, s{off_sgpr}')
    c(f's_mov_b32 s{d+3}, 0x20000')

FS = {'n': 0, 'names': []}
def stamp(c, name, lvl=1):
    if PROF < lvl: return
    rot = [12, 94, 0]; n = FS['n']
    if n >= 2: c(f'v_writelane_b32 v{vPR}, s{rot[(n-2) % 3]}, {n}')
    c(f's_memtime s[{rot[n % 3]}:{rot[n % 3]+1}]'); FS['n'] += 1; FS['names'].append(name)
def prof_out(c, typ):
    if not PROF: return
    c('s_waitcnt vmcnt(0)')
    stamp(c, 'drain'); stamp(c, 'x'); stamp(c, 'x')
    c(f's_memrealtime s[12:13]\ns_waitcnt lgkmcnt(0)\nv_writelane_b32 v{vPR}, s12, 63')
    c(f's_lshl_b32 s3, s2, 3\ns_add_u32 s3, s3, s{sW}\ns_lshl_b32 s3, s3, 8\ns_add_u32 s3, s3, {PRB}')
    c(f'v_and_b32 v144, 63, v0\nv_lshlrev_b32 v144, 2, v144')
    c(f'buffer_store_dword v{vPR}, v144, {srd(SWS)}, s3 offen')

STEPS = {
    'F': [dict(parts=2, D=vDA, K=sKA, pat=vPDU, dparts=2, ts=2048), dict(parts=2, D=vDA, K=sKA, pat=vPDU, dparts=2, ts=2048), dict(parts=1, D=vDB, K=sKA, pat=vPX, dparts=1, ts=1024)],
    'H': [dict(parts=1, D=vDB, K=sKB, pat=vPX, dparts=1, ts=2048), dict(parts=2, D=vDB, K=sKB, pat=vPX, dparts=2, ts=2048), dict(parts=2, D=vDA, K=sKA, pat=vPDU, dparts=2, ts=2048)],
}
HB_ = eval(os.environ.get('HBARS', '[0,2,4,5,7,8,9,10,11,12,13,14,15,17,19]'))
CFG = {
    'F': dict(bars=[0, 1, 2, 3, 4, 5, 7, 8, 10, 12, 14, 16, 18], dgap=2, xrate=env('XRF', 0.6), init={0: 7, 1: 8, 2: 9}, reserved={6}, fast=env('FASTF', 14),
              stbar=8, relbar={10: [6]}, clrbar=None, pollu=105, cfbar=16, abar=16, pollA=135, bud=[2, env('BF1', 4.6), 5.5]),
    'H': dict(bars=HB_, dgap=2, maxgap=env('MAXGAP', 4), xrate=1.2, init={0: 7, 1: 7.5, 2: 8, 3: 8.5, 4: 9},
              reserved={3, 4, 5, 6}, scrbar=15, phibar=2, fast=env('FASTH', 10), relbar={17: [3, 4, 5, 6]}, holdslot=(9, 8), clrbar=8, clr0=8, clrgap=5, pollu=env('POLLUH', 78), cfbar=15, pollA=env('POLLAH', 108), habar=19, bud=[3.5, 4.4, 5]),
}

def dma_off(c, stride, D, L, T, clip):
    c(f'''
    v_lshrrev_b32 v{T}, 3, v0
    v_bfe_u32 v{T+1}, v{L}, 4, 1
    v_and_b32 v{T+2}, 7, v{L}
    v_lshlrev_b32 v{T+1}, 2, v{T+1}
    v_xor_b32 v{T+1}, v{T+1}, v{T+2}
    v_xor_b32 v{T+2}, 2, v{T+1}
    v_mul_u32_u24 v{T}, {stride}, v{T}
    ''')
    if clip: c(f'v_min_u32 v{T+1}, 6, v{T+1}\nv_min_u32 v{T+2}, 6, v{T+2}')
    c(f'v_lshl_add_u32 v{D[0]}, v{T+1}, 4, v{T}\nv_lshl_add_u32 v{D[1]}, v{T+2}, 4, v{T}')

def tr_pat(c, kind, L, T):
    c(f'''
    v_lshrrev_b32 v{T}, 5, v{L}
    v_bfe_u32 v{T+1}, v{L}, 2, 2
    v_lshl_add_u32 v{T}, v{T}, 3, v{T+1}
    v_and_b32 v{T+1}, 3, v{L}
    v_lshlrev_b32 v{T+1}, 3, v{T+1}
    v_bfe_u32 v{T+2}, v{L}, 4, 1
    ''')
    if kind in ('du', 'head'):
        c(f'''
        v_bfe_u32 v{T+3}, v{L}, 3, 1
        v_lshlrev_b32 v{T+3}, 6, v{T+3}
        v_lshl_add_u32 v{T+1}, v{T+2}, 5, v{T+1}
        s_mul_i32 s{sTMP}, s{sG}, {64 if kind == 'du' else 56}
        v_add_u32 v{T+1}, s{sTMP}, v{T+1}
        v_xor_b32 v{T+1}, v{T+1}, v{T+3}
        v_lshl_add_u32 v{vPDU if kind == 'du' else vPX}, v{T}, 7, v{T+1}
        ''')
    else:
        c(f'''
        v_xor_b32 v{T+3}, s{sG}, v{T+2}
        v_lshl_add_u32 v{T+1}, v{T+3}, 5, v{T+1}
        v_lshl_add_u32 v{T+1}, v{T+2}, 12, v{T+1}
        v_lshl_add_u32 v{vPX}, v{T}, 6, v{T+1}
        ''')

def dma(c, typ, slab, slot, part, so=None):
    step, q = divmod(slab, 7); S = STEPS[typ][step]
    c(f's_add_u32 m0, s{sM0}, {int(slot*16384) + part*8192}')
    if so is None: so = S['K'] + q
    c.p(P('slotend'))
    c(f'buffer_load_dwordx4 v{S["D"][part]}, {srd(SW[step][part])}, s{so} offen lds', tag=f'W{slab}')

sW2 = 76; sHD = 77; sV = sJ
def w2_consts(q):
    if q < 4: b, o, d = 0, 640 * (q & 1) + 64 * (q >> 1), 640 * (1 - 2 * (q & 1))
    elif q == 4: b, o, d = 1, 0, 0
    elif q < 7: b, o, d = 2, 256 * (q - 5), 256 * (1 - 2 * (q - 5))
    else: b, o, d = 3, q - 7, 1 - 2 * (q - 7)
    return b, o, d * env('PARITY', 1)

def dma2(c, q, slots, k):
    b, off, d = w2_consts(q)
    m = 896 if q < 7 else 56 * 896
    if k == 0:
        c(f's_mul_i32 s{sMT}, s{sG}, {(slots[1]-slots[0])*16384}\ns_add_u32 s{sMT}, s{sMT}, s{sM2}')
        c(f's_mul_i32 s{sW2}, s{sV}, {d*m}\ns_add_u32 s{sW2}, s{sW2}, s{sWB[b]}')
    c(f's_add_u32 m0, s{sMT}, {slots[0]*16384 + k*1024}')
    c(f's_add_u32 s{sD}, s{sW2}, {off*m + 8*k*896}')
    c(f'buffer_load_dwordx4 v{vD2}, {srd(SWD if q < 7 else SWO)}, s{sD} offen lds', tag=f'V{q}')

def xloads(c, g, tag=None):
    for q in range(7):
        c(f'buffer_load_dwordx4 {vr(80 + 28*g + 4*q, 4)}, v{28+g}, {srd(SX)}, s{sXO+q} offen', tag)

LNC = f'''
    v_mov_b32 v56, 0x3f803f80
    v_mov_b32 v57, 0x3f803f80
    v_and_b32 v34, 1, v27
    v_lshlrev_b32 v35, 4, v34
    v_mov_b32 v36, 0x3f80
    v_lshlrev_b32 v36, v35, v36
    v_and_b32 v35, 2, v27
    v_cmp_eq_u32 s[62:63], 0, v35
    v_cmp_eq_u32 s[60:61], 0, v34
    v_cndmask_b32 v58, 0, v36, s[62:63]
    v_cndmask_b32 v59, v36, 0, s[62:63]
    v_bfe_u32 v36, v32, 1, 3
    v_xor_b32 v36, v36, v31
    v_lshlrev_b32 v36, 4, v36
    v_lshl_add_u32 v40, v32, 7, v36
    v_add_u32 v41, 0x10000, v40
    v_xor_b32 v42, 0x2000, v40
    v_xor_b32 v43, 0x2000, v41
    v_xor_b32 v33, 64, v32
    v_mul_u32_u24 v29, 896, v33
    v_lshl_add_u32 v29, v31, 4, v29
    v_lshlrev_b32 v{vL16}, 4, v27
    s_and_b32 s{sB}, s{sW}, 3
'''

def top_common(c):
    ROTC = {2: f's_lshl_b32 s{sT}, s{sT}, 1', 0: f's_mov_b32 s{sT}, 0', 1: f's_and_b32 s{sT}, s{sT}, 1\ns_mul_i32 s{sT}, s{sT}, 3', 3: 's_nop 0'}[env('ROTM', 0)]
    sST = sKB + 6; sCL = sKB + 5
    c(f'''
    s_getpc_b64 s[{SWS}:{SWS+1}]
    KM_PC:
    s_mov_b32 s{SWS+2}, KM_EXIT-KM_PC
    s_mov_b32 s{SWS+3}, 0x20000
    s_lshr_b32 s{sTMP}, s2, 3
    s_mul_i32 s{sTMP}, s{sTMP}, 1280
    v_add_u32 v35, 6, v0
    v_lshlrev_b32 v34, 7, v0
    v_lshrrev_b32 v35, 4, v35
    v_lshl_add_u32 v34, v35, 20, v34
    ''')
    c(f'buffer_load_dword v249, v34, {srd(SWS)}, s{sTMP} offen', 'raw')
    c(f'''
    v_lshrrev_b32 v26, 6, v0
    v_and_b32 v27, 63, v0
    v_readfirstlane_b32 s{sW}, v26
    s_bfe_u32 s{sROT}, s2, 0x20001
    s_lshr_b32 s{sT}, s2, 6
    s_lshl_b32 s{sI}, s{sROT}, 2
    s_add_u32 s{sI}, s{sI}, s{sT}
    {ROTC}
    s_add_u32 s{sROT}, s{sROT}, s{sT}
    s_and_b32 s{sT}, s2, 8
    s_lshr_b32 s{sT}, s{sT}, 1
    s_add_u32 s{sROT}, s{sROT}, s{sT}
    s_lshr_b32 s{sT}, s2, 2
    s_andn2_b32 s{sT}, s{sT}, 1
    s_add_u32 s{sT}, s{sT}, s{sW}
    s_and_b32 s{sT}, s{sT}, 15
    s_lshl_b32 s{sT}, s{sT}, 3
    s_lshl_b32 s{sTMP}, s{sROT}, 7
    ''')
    for q in range(7):
        if q: c(f's_add_u32 s{sTMP}, s{sXO+q-1}, 128')
        c(f'''
        s_cmp_ge_u32 s{sTMP}, 896
        s_cselect_b32 s{sTMP2}, 896, 0
        s_sub_u32 s{sXO+q}, s{sTMP}, s{sTMP2}
        ''')
    c(f'''
    v_lshrrev_b32 v30, 3, v27
    v_and_b32 v31, 7, v27
    v_add_u32 v32, s{sT}, v30
    v_mul_u32_u24 v28, 896, v32
    v_lshl_add_u32 v28, v31, 4, v28
    s_lshr_b32 s{sG}, s{sW}, 2
    s_lshl_b32 s{sM0}, s{sW}, 10
    s_and_b32 s{sJ}, s2, 1
    s_lshl_b32 s{sJ}, s{sJ}, 2
    s_bfe_u32 s{sT}, s2, 0x20003
    s_add_u32 s{sJ}, s{sJ}, s{sT}
    s_mul_i32 s{sH[0]}, s{sJ}, 160
    s_and_b32 s{sTMP}, s{sJ}, 1
    s_lshl_b32 s{sTMP}, s{sTMP}, 5
    s_add_u32 s{sH[0]}, s{sH[0]}, s{sTMP}
    s_add_u32 s{sH[0]}, s{sH[0]}, 512
    s_lshl_b32 s{sTMP2}, s{sH[0]}, 1
    s_mul_i32 s{sH[1]}, s{sJ}, 112
    s_add_u32 s{sTMP}, s{sH[1]}, 896
    s_movk_i32 s{sST}, 3584
    s_bitcmp1_b32 s2, 5
    s_cselect_b32 s{sTMP2}, s{sTMP}, s{sTMP2}
    s_cselect_b32 s{sST}, 2688, s{sST}
    s_cselect_b32 s{sCL}, 6, 7
    v_lshrrev_b32 v34, 3, v0
    v_bfe_u32 v35, v27, 4, 1
    v_lshlrev_b32 v35, 2, v35
    v_xor_b32 v35, v35, v31
    v_xor_b32 v36, 2, v35
    v_mul_u32_u24 v34, s{sST}, v34
    v_min_u32 v35, s{sCL}, v35
    v_min_u32 v36, s{sCL}, v36
    v_lshl_add_u32 v{vDA[0]}, v35, 4, v34
    v_lshl_add_u32 v{vDA[1]}, v36, 4, v34
    v_mov_b32 v{vDB[0]}, v{vDA[0]}
    v_mov_b32 v{vDB[1]}, v{vDA[1]}
    s_lshr_b32 s{sCL}, s{sST}, 1
    s_mul_i32 s{sKB}, s{sXO}, s{sCL}
    s_lshl_b32 s{sKB+1}, s{sST}, 5
    s_add_u32 s{sKB+1}, s{sKB+1}, s{sKB}
    s_mul_i32 s{sST}, s{sST}, 448
    s_mul_i32 s{sTMP}, s{sI}, 114688
    s_bitcmp1_b32 s2, 5
    s_waitcnt lgkmcnt(0)
    s_cselect_b64 s[52:53], s[6:7], s[14:15]
    ''')
    if PROF: c(f'v_writelane_b32 v{vPR}, s66, 0\nv_writelane_b32 v{vPR}, s92, 1')
    mk_srd(c, SW[0][0], 52, sTMP2, f's{sST}')
    mk_srd(c, SW[0][1], 16, sTMP2, 448 * 3584)
    mk_srd(c, SX, 4, sTMP, 2048 * 896)
    c(f's_cmp_lg_u32 s{sG}, 0\ns_cbranch_scc1 KM_Y')
    if env('PFQ', 0): share_pf(c, SPHI, 6, 448 * 2688, 37, 2, 0, 34, 248, 'raw')
    for part in range(2):
        if part: c('s_bitcmp1_b32 s2, 5\ns_cbranch_scc1 KM_A')
        for k in range(2):
            c(f's_add_u32 m0, s{sM0}, {7*16384 + part*8192 + k*4096}')
            c(f'buffer_load_dwordx4 v{vDA[part]}, {srd(SW[0][part])}, s{sKB+k} offen lds', 'raw')
    c('KM_A:')
    xloads(c, 0, 'raw')
    c('KM_Y:')
    c(LNC)
    c('s_bitcmp1_b32 s2, 5\ns_cbranch_scc0 KM_SF\nKM_SETUP:\nKM_X0:')
    xloads(c, 0)
    c('KM_X1:')
    xloads(c, 1)
    stamp(c, 'g1', 2)
    for q in range(7): c(f's_mul_i32 s{sKB+q}, s{sXO+q}, 1344\ns_mul_i32 s{sKA+q}, s{sXO+q}, 1792')
    layernorm(c)
    stamp(c, 'ln')

def dma_both(c, typ, s, slot, part):
    so = STEPS[typ][0]['K'] + s
    dma(c, typ, s, slot, part, so=so)
    c(f's_add_u32 s{sD}, s{so}, {32 * (3584 if typ == "F" else 2688)}')
    dma(c, typ, s, slot + 0.25, part, so=sD)

def hreg(q): return XF + 16 * (q if q < 7 else q - 7)
def hpre(q):
    b, off, d = w2_consts(q); m = 64 if q < 7 else 4096
    return f's_mul_i32 s{sHD}, s{sV}, {d*m}\ns_add_u32 s{sHD}, s{sHD}, s{sHB[b]}\ns_add_u32 s{sHD}, s{sHD}, {off*m}'
def hloads(q): return [f'buffer_load_dwordx4 {vr(hreg(q)+4*t,4)}, v{vL16}, {srd(SWS)}, s{sHD} offen offset:{t*1024} sc1' for t in range(4)]
def hgroups(q):
    return [Stream()((hpre(q) + '\n' if t == 0 else '') + l) for t, l in enumerate(hloads(q))]

def prologue(c, typ):
    st0 = STEPS[typ][0]
    init = [(s, slot, part) for s, slot in CFG[typ]['init'].items() for part in range(st0['dparts']) if s > 0]
    c(f'v_lshlrev_b32 v{vLS+2}, 2, v32\nv_add_u32 v{vLS+2}, {STAT[typ]}, v{vLS+2}')
    if typ == 'H': stat_put(c)
    c(f's_cmp_lg_u32 s{sG}, 0\ns_cbranch_scc1 KM_B{typ}')
    c.p(BEGIN('old'))
    for n, (s, slot, part) in enumerate(init):
        dma_both(c, typ, s, slot, part)
        if typ == 'H' and n == 0:
            c(f's_mul_i32 s{sTMP}, s{sJ}, 3136')
            mk_srd(c, SPHI, 8, sTMP, 16 * 1568)
            c(f'''
            s_mul_i32 s{sTMP}, s{sW}, 800
            s_add_u32 m0, s{sTMP}, {MISC}
            s_mov_b32 exec_hi, 0x3ffff
            ''')
            c(f'buffer_load_dwordx4 v{vL16}, {srd(SPHI)}, s{sTMP} offen lds', tag='W2')
            c('s_mov_b32 exec_hi, -1')
    mall_prefetch(c, typ)
    c.p(END('old'))
    c(f'KM_B{typ}:\ns_nop 1')

def setup_block(typ):
    c = Stream()
    c(f'KM_S{typ}:')
    tr_pat(c, 'du' if typ == 'F' else 'head', 27, 34)
    c(f'''
    v_and_b32 v34, 31, v27
    s_lshl_b32 s{sTMP}, s{sB}, 5
    v_add_u32 v34, s{sTMP}, v34
    v_bfe_u32 v35, v27, 1, 3
    v_lshrrev_b32 v36, 5, v27
    v_xor_b32 v35, v35, v36
    v_lshlrev_b32 v35, 4, v35
    v_lshl_add_u32 v{vXA}, v34, 7, v35
    v_xor_b32 v{vXA+1}, 32, v{vXA}
    v_xor_b32 v{vXA+2}, 64, v{vXA}
    v_xor_b32 v{vXA+3}, 96, v{vXA}
    ''')
    if typ == 'H':
        c(f's_add_u32 s{sTMP2}, s{sH[1]}, 1792')
        mk_srd(c, SW[1][0], 6, sTMP2, 448 * 2688)
        mk_srd(c, SW[1][1], 6, sH[1], 448 * 2688)
    late_setup(c, typ)
    clear_prep(c, typ)
    c(f's_cmp_lg_u32 s{sG}, 0\ns_cbranch_scc1 KM_X0\ns_branch KM_X1')
    return finish(c)

def layernorm(c):
    M4 = 'v_mfma_f32_4x4x4_16b_bf16'
    SA = [60, 64]; QA = [68, 72]; CM = 76; DT = [136, 140, 144, 148]
    inv = hx(f2u(1.0 / 448))
    for g in range(2):
        R = 80 + 28 * g
        for d in range(14):
            if d == 1 and g == 0: stamp(c, 'x0')
            if d == 13 and g == 1: stamp(c, 'x1')
            a = d & 1
            c(f'{M4} {vr(SA[a],4)}, v[56:57], {vr(R+2*d,2)}, ' + ('0' if d < 2 else vr(SA[a], 4)))
            c(f'{M4} {vr(QA[a],4)}, {vr(R+2*d,2)}, {vr(R+2*d,2)}, ' + ('0' if d < 2 else vr(QA[a], 4)))
        S = SA[0]; Q = QA[0]
        c(f'v_add_f32 v{S}, v{S}, v{SA[1]}')
        for k in range(4): c(f'v_add_f32 v{Q+k}, v{Q+k}, v{QA[1]+k}')
        c(f'v_add_f32_dpp v{S}, v{S}, v{S} quad_perm:[1,0,3,2] row_mask:0xf bank_mask:0xf')
        c(f'v_cndmask_b32 v{Q}, v{Q+1}, v{Q}, s[60:61]\nv_cndmask_b32 v{Q+2}, v{Q+3}, v{Q+2}, s[60:61]')
        c(f'v_add_f32_dpp v{S}, v{S}, v{S} quad_perm:[2,3,0,1] row_mask:0xf bank_mask:0xf')
        c(f'v_cndmask_b32 v{Q}, v{Q+2}, v{Q}, s[62:63]')
        c(f'v_add_f32_dpp v{S}, v{S}, v{S} row_half_mirror row_mask:0xf bank_mask:0xf')
        c(f'''
        v_mul_f32 v{S}, {hx(f2u(-1.0 / 448))}, v{S}
        v_cvt_pk_bf16_f32 v{S+1}, v{S}, v{S}
        v_and_b32 v{CM}, 0xffff0000, v{S+1}
        v_and_b32 v{CM+1}, 0xffff0000, v{S+1}
        v_and_b32 v{CM+2}, 0xffff0000, v{S+1}
        v_and_b32 v{CM+3}, 0xffff0000, v{S+1}
        ''')
        def cen(d): c(f'{M4} {vr(DT[d&3],4)}, v[58:59], {vr(R+2*d,2)}, {vr(CM,4)}')
        cen(0); cen(1)
        for d in range(14):
            if d + 2 < 14: cen(d + 2)
            t = DT[d & 3]
            c(f'v_cvt_pk_bf16_f32 v{R+2*d}, v{t}, v{t+1}\nv_cvt_pk_bf16_f32 v{R+2*d+1}, v{t+2}, v{t+3}')
            if d & 1:
                q = d >> 1
                a, off = (40 + 2 * g, q * 16384) if q < 4 else (41 + 2 * g, (q - 4) * 16384)
                c(f'ds_write_b128 v{a}, {vr(R+4*q, 4)} offset:{off}')
        for dpp in ('quad_perm:[1,0,3,2]', 'quad_perm:[2,3,0,1]', 'row_half_mirror'):
            c(f'v_add_f32_dpp v{Q}, v{Q}, v{Q} {dpp} row_mask:0xf bank_mask:0xf')
        c(f'''
        v_mul_f32 v{Q}, {inv}, v{Q}
        v_fma_f32 v{Q}, -v{S}, v{S}, v{Q}
        v_max_f32 v{Q}, 0, v{Q}
        v_cvt_pk_bf16_f32 v{Q}, v{Q}, v{Q}
        v_and_b32 v{Q}, 0xffff0000, v{Q}
        v_add_f32 v{Q}, {hx(f2u(1e-5))}, v{Q}
        v_cvt_pk_bf16_f32 v{Q}, v{Q}, v{Q}
        v_and_b32 v{Q}, 0xffff0000, v{Q}
        v_sqrt_f32 v{Q}, v{Q}
        v_cvt_pk_bf16_f32 v{Q}, v{Q}, v{Q}
        v_and_b32 v{vLS+g}, 0xffff0000, v{Q}
        ''')

def stat_put(f):
    f(f'ds_write_b32 v{vLS+2}, v{vLS}', tag='st')
    f(f'v_xor_b32 v{vLS+2}, 256, v{vLS+2}')
    f(f'ds_write_b32 v{vLS+2}, v{vLS+1}', tag='st')

def stat_get(f, typ):
    f(f'''
    v_and_b32 v{vC1}, 31, v0
    s_lshl_b32 s{sTMP}, s{sB}, 7
    s_add_u32 s{sTMP}, s{sTMP}, {STAT[typ]}
    v_lshlrev_b32 v{vC1}, 2, v{vC1}
    v_add_u32 v{vC1}, s{sTMP}, v{vC1}
    ''')
    if typ == 'F': f.p(SYNC('stbar'))
    f(f'ds_read_b32 v{vSD}, v{vC1}')
    f.p(GAP(1))
    f(f'''
    v_rcp_f32 v{vRL}, v{vSD}
    v_mul_f32 v{vSD2}, v{vSD}, v{vSD}
    v_mul_f32 v{vK0}, {hx(f2u(GK0))}, v{vRL}
    v_mul_f32 v{vC1}, v{vRL}, v{vRL}
    v_mul_f32 v{vC1}, {hx(f2u(0.044715))}, v{vC1}
    v_mul_f32 v{vC1}, v{vK0}, v{vC1}
    v_mul_f32 v{vRL}, {hx(f2u(LOG2E))}, v{vRL}
    ''')

def kf_addr(c, A, T):
    c(f'''
    v_and_b32 v{T}, 7, v0
    v_bfe_u32 v{A}, v0, 5, 1
    v_lshlrev_b32 v{A}, 2, v{A}
    v_lshl_add_u32 v{A}, v{T}, 4, v{A}
    v_and_b32 v{T+1}, 24, v0
    v_lshlrev_b32 v{T+1}, 26, v{T+1}
    v_or_b32 v{A}, v{A}, v{T+1}
    ''')

def late_setup(c, typ):
    T = 34; L = 27
    if typ == 'F':
        c(f's_add_u32 s{sH[1]}, s{sH[0]}, 64\ns_lshl_b32 s{sTMP2}, s{sH[1]}, 1')
        mk_srd(c, SW[1][0], 14, sTMP2, 448 * 3584)
        mk_srd(c, SW[1][1], 16, sTMP2, 448 * 3584)
        c(f'''
        s_and_b32 s{sTMP}, s{sJ}, 1
        s_mul_i32 s{sTMP2}, s{sTMP}, 160
        s_add_u32 s{sH[2]}, s{sH[0]}, 128
        s_sub_u32 s{sH[2]}, s{sH[2]}, s{sTMP2}
        s_lshl_b32 s{sTMP2}, s{sH[2]}, 1
        s_cmp_eq_u32 s{sG}, 0
        s_cselect_b64 s[52:53], s[14:15], s[16:17]
        ''')
        mk_srd(c, SW[2][0], 52, sTMP2, 448 * 3584)
        c(f'''
        v_bfe_u32 v{T}, v0, 2, 6
        v_mul_u32_u24 v{T}, 3584, v{T}
        s_lshl_b32 s{sTMP}, s{sG}, 1
        v_and_b32 v{T+1}, 3, v{L}
        v_xor_b32 v{T+1}, s{sTMP}, v{T+1}
        v_lshl_add_u32 v{vDB[0]}, v{T+1}, 4, v{T}
        ''')
        tr_pat(c, 'half', L, T)
    else:
        c(f's_mov_b32 s{sHI}, 0\ns_mov_b32 s{sHI+1}, -1')
        c(f'''
        v_bfe_u32 v{T}, v{L}, 3, 2
        v_and_b32 v{T+1}, 3, v{L}
        v_lshl_add_u32 v{T}, v{T}, 2, v{T+1}
        v_bfe_u32 v{T+1}, v{L}, 2, 1
        v_mad_u32_u24 v{T}, v{T+1}, 14, v{T}
        v_min_u32 v{T}, 27, v{T}
        v_lshrrev_b32 v{T+1}, 5, v{L}
        v_mul_u32_u24 v{T+1}, 224, v{T+1}
        v_lshl_add_u32 v{T}, v{T}, 1, v{T+1}
        s_mul_i32 s{sTMP}, s{sG}, 1568
        s_add_u32 s{sTMP}, s{sTMP}, {MISC}
        v_add_u32 v47, s{sTMP}, v{T}
        ''')
        c(f's_lshl_b32 s{sH[2]}, s{sJ}, 6\ns_lshl_b32 s{sTMP2}, s{sJ}, 7')
        mk_srd(c, SW[2][0], 14, sTMP2, 448 * 3584)
        mk_srd(c, SW[2][1], 16, sTMP2, 448 * 3584)
        dma_off(c, 3584, vDA, L, T, False)
        tr_pat(c, 'du', L, T)
    mk_srd(c, SWS, 24, None, WS_END)
    c(f'''
    s_lshl_b32 s{sTMP}, s{sI}, 2
    s_add_u32 s{sTMP}, s{sTMP}, s{sB}
    s_mul_i32 s{sTMP2}, s{sTMP}, {144*1024}
    ''')
    for step in ([0, 1, 2] if typ == 'F' else [2]):
        c(f'''
        s_lshl_b32 s{sH[step]}, s{sH[step]}, 6
        s_add_u32 s{sH[step]}, s{sH[step]}, s{sTMP2}
        s_lshl_b32 s{sT}, s{sG}, {11 if STEPS[typ][step]['parts'] == 2 else 10}
        s_add_u32 s{sH[step]}, s{sH[step]}, s{sT}
        ''')
    if typ == 'H':
        c(f'''
        s_lshl_b32 s{sROT}, s{sJ}, 1
        s_add_u32 s{sROT}, s{sROT}, s{sG}
        s_lshl_b32 s{sO}, s{sROT}, 11
        s_add_u32 s{sO}, s{sO}, s{sTMP2}
        s_add_u32 s{sO}, s{sO}, {HB + 112*1024}
        s_lshl_b32 s{sKPR}, s{sROT}, 2
        s_add_u32 s{sKPR}, s{sKPR}, s{sB}
        s_lshl_b32 s{sKPR}, s{sKPR}, 15
        s_add_u32 s{sKPR}, s{sKPR}, {KP}
        s_lshl_b32 s{sTMP}, s{sI}, 11
        s_add_u32 s{sKPW}, s{sKPR}, s{sTMP}
        s_lshl_b32 s{sTMP}, s{sI}, 7
        s_add_u32 s{sKPR}, s{sKPR}, s{sTMP}
        s_lshl_b32 s{sKFR}, s{sROT}, 12
        s_add_u32 s{sKFR}, s{sKFR}, {KF}
        s_and_b32 s{sKFW}, s{sB}, 1
        s_lshl_b32 s{sKFW}, s{sKFW}, 1
        s_lshr_b32 s{sTMP}, s{sI}, 3
        s_add_u32 s{sKFW}, s{sKFW}, s{sTMP}
        s_lshl_b32 s{sKFW}, s{sKFW}, 10
        s_lshr_b32 s{sTMP}, s{sB}, 1
        s_lshl_b32 s{sTMP}, s{sTMP}, 8
        s_add_u32 s{sKFW}, s{sKFW}, s{sTMP}
        s_and_b32 s{sTMP}, s{sI}, 1
        s_lshl_b32 s{sTMP}, s{sTMP}, 7
        s_add_u32 s{sKFW}, s{sKFW}, s{sTMP}
        s_bfe_u32 s{sTMP}, s{sI}, 0x10001
        s_lshl_b32 s{sTMP}, s{sTMP}, 9
        s_add_u32 s{sKFW}, s{sKFW}, s{sTMP}
        s_bfe_u32 s{sTMP}, s{sI}, 0x10002
        s_lshl_b32 s{sTMP}, s{sTMP}, 3
        s_add_u32 s{sKFW}, s{sKFW}, s{sTMP}
        s_add_u32 s{sKFW}, s{sKFW}, s{sKFR}
        ''')
        c(f'''
        s_mul_i32 s{sTMP}, s{sG}, 29696
        s_add_u32 s{sTMP}, s{sTMP}, {SCR}
        s_lshl_b32 s{sTMP2}, s{sB}, 5
        v_and_b32 v{T}, 31, v{L}
        v_add_u32 v{T}, s{sTMP2}, v{T}
        v_mul_u32_u24 v{T}, 232, v{T}
        v_lshrrev_b32 v{T+1}, 5, v{L}
        v_lshl_add_u32 v{T}, v{T+1}, 3, v{T}
        v_add_u32 v{vSW}, s{sTMP}, v{T}
        v_bfe_u32 v{T}, v{L}, 2, 3
        v_lshlrev_b32 v{T}, 2, v{T}
        v_lshl_add_u32 v{T}, v{T+1}, 1, v{T}
        v_mul_u32_u24 v{T}, 232, v{T}
        v_and_b32 v{T+1}, 3, v{L}
        v_lshl_add_u32 v{T}, v{T+1}, 3, v{T}
        v_add_u32 v{T}, s{sTMP}, v{T}
        s_and_b32 s{sTMP}, s{sB}, 1
        s_lshl_b32 s{sTMP}, s{sTMP}, 6
        v_add_u32 v{vSA}, s{sTMP}, v{T}
        s_lshr_b32 s{sTMP}, s{sB}, 1
        s_lshl_b32 s{sTMP}, s{sTMP}, 5
        s_add_u32 s{sTMP}, s{sTMP}, 128
        v_add_u32 v{vSB}, s{sTMP}, v{T}
        ''')

def phi_load(c):
    for tp in range(2):
        for e in range(8):
            d = 16 * tp + 8 * (e >> 2) + (e & 3)
            c(f'ds_read_u16 v{(vT+6 if e & 1 else vPHI)+4*tp+(e>>1)}, v47 offset:{d*56}')
    c.p(GAP(2))
    for k in range(8): c(f'v_lshl_or_b32 v{vPHI+k}, v{vT+6+k}, 16, v{vPHI+k}')
    for k in (6, 7): c(f'v_cndmask_b32 v{vPHI+k}, v{vPHI+k}, 0, s[{sHI}:{sHI+1}]')

def clear_prep(c, typ):
    if typ == 'F': return
    for k in range(4): c(f'v_mov_b32 v{48+k}, -1')
    kf_addr(c, vCF, 34)

def clears(typ):
    if typ == 'F': return []
    M = 48
    def st(s, off): return Stream()(f'buffer_store_dwordx4 {vr(M,4)}, v{vL16}, {srd(SWS)}, s{s} offen offset:{off} {ST}', tag='clr')
    g = [Stream()(f'buffer_store_dword v{M}, v{vCF}, {srd(SWS)}, s{sKFW} offen {ST}', tag='clr'), st(sKPW, 0), st(sKPW, 1024)]
    g[0](f'''
    s_lshr_b32 s{sD}, s2, 6
    s_lshl_b32 s{sD}, s{sD}, 5
    s_and_b32 s{sMT}, s2, 31
    s_add_u32 s{sD}, s{sD}, s{sMT}
    s_lshr_b32 s{sD}, s{sD}, 1
    s_lshl_b32 s{sD}, s{sD}, 7
    s_add_u32 s{sD}, s{sD}, {CNT}
    v_lshlrev_b32 v{vCF}, 21, v0
    v_lshlrev_b32 v{vCF+1}, 25, v0
    v_or_b32 v{vCF}, v{vCF}, v{vCF+1}
    v_lshrrev_b32 v{vCF}, 1, v{vCF}
    v_mov_b32 v{vCF+1}, 0
    ''')
    g[0](f'buffer_store_dword v{vCF+1}, v{vCF}, {srd(SWS)}, s{sD} offen {ST}', tag='clr')
    g[-1](f'''
    s_and_b32 s{sD}, s2, 3
    s_lshl_b32 s{sD}, s{sD}, 6
    v_lshlrev_b32 v{vCF}, 20, v0
    v_add_u32 v{vCF}, s{sD}, v{vCF}
    v_mov_b32 v{vCF+1}, 1
    ''')
    return g

def flag_setup(c):
    c(f'''
    s_lshl_b32 s{sD}, s{sI}, 9
    s_add_u32 s{sD}, s{sD}, {CNT}
    v_mov_b32 v{vCF}, s{sD}
    v_mov_b32 v{vCF+1}, {hx(OOB)}
    v_cmp_eq_u32 vcc, 0, v0
    v_cndmask_b32 v{vCF}, v{vCF+1}, v{vCF}, vcc
    v_cndmask_b32 v{vRQ}, 0, 1, vcc
    ''')
def arrive(c, s): c(f'buffer_atomic_add v{vRQ}, v{vCF}, {srd(SWS)}, 0 offen offset:{128*s} sc1')
def poll(c, s): c(f'buffer_load_dword v{vCF+1}, v{vCF}, {srd(SWS)}, 0 offen offset:{128*s} sc1')
def poll_check(c, s, typ):
    n = f'P{s}{typ}'
    c(f'v_lshrrev_b32 v{vCF+1}, 3, v{vCF+1}\nv_cmp_gt_u32 vcc, v{vRQ}, v{vCF+1}\ns_cbranch_vccnz R_{n}\nB_{n}:')
    RETRY.append(f'''R_{n}:
    s_mov_b32 s{sTMP2}, 0x8000
L_{n}:
    s_sleep {env('PSLEEP', 6)}
    buffer_load_dword v{vCF+1}, v{vCF}, {srd(SWS)}, 0 offen offset:{128*s} sc1
    s_waitcnt vmcnt(0)
    v_lshrrev_b32 v{vCF+1}, 3, v{vCF+1}
    v_cmp_gt_u32 vcc, v{vRQ}, v{vCF+1}
    s_cbranch_vccz B_{n}
    s_sub_u32 s{sTMP2}, s{sTMP2}, 1
    s_cmp_lg_u32 s{sTMP2}, 0
    s_cbranch_scc1 L_{n}
    s_branch B_{n}''')

def share_pf(c, quad, ptr, size, nl, sidx, tid, T, dst, tag=None):
    mk_srd(c, quad, ptr, None, size)
    c(f'''
    s_mul_i32 s{sD}, s{sidx}, {nl*128}
    v_add_u32 v{T+1}, {512-nl}, v{tid}
    v_lshlrev_b32 v{T}, 7, v{tid}
    v_lshrrev_b32 v{T+1}, 9, v{T+1}
    v_lshl_add_u32 v{T}, v{T+1}, 22, v{T}
    ''')
    c(f'buffer_load_dword v{dst}, v{T}, {srd(quad)}, s{sD} offen', tag)

def f_index(c, d):
    c(f's_lshr_b32 s{d}, s2, 6\ns_lshl_b32 s{d}, s{d}, 5\ns_and_b32 s{sD}, s2, 31\ns_add_u32 s{d}, s{d}, s{sD}')

def mall_prefetch(c, typ):
    if typ == 'H' or not env('PFW1', 1): return
    f_index(c, sTMP)
    c('v_xor_b32 v33, 128, v0')
    if env('PFQ2', 1): share_pf(c, SPHI, 6, 448 * 2688, 74, sTMP, 33, 34, 252)
    share_pf(c, SPHI, 14, 448 * 3584, 98, sTMP, 0, 34, 250)
    share_pf(c, SPHI, 16, 448 * 3584, 98, sTMP, 33, 34, 251)

def w2_prefetch(c):
    f_index(c, 90)
    c('v_xor_b32 v17, 128, v0')
    share_pf(c, 52, 18, 1792 * 896, 98, 90, 0, 15, 18)
    share_pf(c, 52, 10, 448 * 896, 25, 90, 17, 15, 19)

def p2_setup(c, typ):
    T = vT + 4
    T2 = vD2
    mk_srd(c, SDBG, 22, None, 256)
    c(f'''
    s_and_b32 s{sCT}, s{sJ}, 3
    {f's_add_u32 s{sCT}, s{sCT}, 4' if typ == 'H' else ''}
    s_and_b32 s{sTMP}, s{sI}, 3
    s_mul_i32 s{sTMP}, s{sTMP}, {env('CTROT', 2)}
    s_add_u32 s{sTMP}, s{sTMP}, s{sCT}
    s_cmp_ge_u32 s{sTMP}, 7
    s_cselect_b32 s{sTMP2}, 7, 0
    s_sub_u32 s{sTMP}, s{sTMP}, s{sTMP2}
    s_lshl_b32 s{sTMP}, s{sTMP}, 7
    ''')
    mk_srd(c, SWD, 18, sTMP, 1792 * 896)
    mk_srd(c, SWO, 10, sTMP, 448 * 896)
    c(f'''
    s_lshr_b32 s{sTMP2}, s{sJ}, 2
    s_lshl_b32 s{sT}, s{sI}, 1
    s_add_u32 s{sT}, s{sT}, s{sTMP2}
    s_mul_i32 s{sTMP2}, s{sT}, {64*896}
    s_add_u32 s{sTMP}, s{sTMP}, s{sTMP2}
    ''')
    mk_srd(c, SXO, 4, sTMP, 2048 * 896)
    mk_srd(c, SOUT, 20, sTMP, 2048 * 896)
    c(f'''
    s_lshr_b32 s{sG2}, s{sW}, 1
    s_and_b32 s{sTMP}, s{sW}, 1
    s_lshl_b32 s{sT}, s{sT}, 1
    s_add_u32 s{sT}, s{sT}, s{sTMP}
    s_mul_i32 s{sT}, s{sT}, {144*1024}
    s_lshl_b32 s{sM2}, s{sB}, 12
    s_mul_i32 s{sTMP}, s{sTMP}, {32*896}
    v_bfe_u32 v{T}, v0, 3, 3
    v_and_b32 v{T+1}, 7, v0
    v_bfe_u32 v{T2}, v0, 4, 1
    v_lshlrev_b32 v{T2}, 2, v{T2}
    v_xor_b32 v{T+1}, v{T+1}, v{T2}
    v_mul_u32_u24 v{T}, 896, v{T}
    v_lshl_add_u32 v{T}, v{T+1}, 4, v{T}
    v_add_u32 v{vD2}, s{sTMP}, v{T}
    s_mul_i32 s{sHB[0]}, s{sG2}, 160
    s_and_b32 s{sTMP}, s{sG2}, 1
    s_lshl_b32 s{sTMP}, s{sTMP}, 5
    s_add_u32 s{sHB[0]}, s{sHB[0]}, s{sTMP}
    s_add_u32 s{sHB[0]}, s{sHB[0]}, 512
    s_mul_i32 s{sHB[1]}, s{sG2}, 320
    s_add_u32 s{sHB[1]}, s{sHB[1]}, 640
    s_lshl_b32 s{sHB[2]}, s{sG2}, 6
    ''')
    for b in range(3):
        c(f's_mul_i32 s{sWB[b]}, s{sHB[b]}, 896\ns_lshl_b32 s{sHB[b]}, s{sHB[b]}, 6\ns_add_u32 s{sHB[b]}, s{sHB[b]}, s{sT}')
    c(f'''
    s_mul_i32 s{sWB[3]}, s{sG2}, {112*896}
    s_lshl_b32 s{sHB[3]}, s{sG2}, 13
    s_add_u32 s{sHB[3]}, s{sHB[3]}, s{sT}
    s_add_u32 s{sHB[3]}, s{sHB[3]}, {112*1024}
    ''')
    if typ == 'H':
        c(f's_cmp_eq_u32 s{sCT}, 7\ns_cselect_b32 s{SWD+2}, 0, s{SWD+2}')
    c(f's_add_u32 s{sV}, s{sCT}, s{sI}\ns_and_b32 s{sV}, s{sV}, 1')
    c.p(DONE('p2'))

def gelu_epi(G, U, n, out_regs):
    f = Stream()
    for i0 in range(0, n, 4):
        idx = list(range(i0, i0 + 4)); T = [vT + k for k in range(4)]
        for k, i in enumerate(idx): f(f'v_mul_f32 v{T[k]}, v{G+i}, v{G+i}')
        for k, i in enumerate(idx): f(f'v_fma_f32 v{T[k]}, v{T[k]}, v{vC1}, v{vK0}')
        for k, i in enumerate(idx): f(f'v_mul_f32 v{T[k]}, v{G+i}, v{T[k]}')
        for k, i in enumerate(idx):
            f(f'v_exp_f32 v{T[k]}, v{T[k]}')
            f(f'v_mul_f32 v{U+i}, v{G+i}, v{U+i}')
        for k, i in enumerate(idx): f(f'v_fma_f32 v{T[k]}, v{T[k]}, v{vSD2}, v{vSD2}')
        for k, i in enumerate(idx): f(f'v_rcp_f32 v{T[k]}, v{T[k]}')
        for k, i in enumerate(idx): f(f'v_mul_f32 v{U+i}, v{U+i}, v{T[k]}')
        for k in (0, 2): f(f'v_cvt_pk_bf16_f32 v{out_regs + (i0+k)//2}, v{U+i0+k}, v{U+i0+k+1}')
    return f

def gelu_du(acc, step, O=vT + 6):
    f = Stream()
    g = gelu_epi(acc, acc + 16, 16, O)
    half = len(g) // 2
    f += g[:half]
    f(f'buffer_store_dwordx4 {vr(O, 4)}, v{vL16}, {srd(SWS)}, s{sH[step]} offen {ST}', tag=f'h{step}')
    f += g[half:]
    f(f'buffer_store_dwordx4 {vr(O+4, 4)}, v{vL16}, {srd(SWS)}, s{sH[step]} offen offset:1024 {ST}', tag=f'h{step}')
    return f

def gelu_half(acc, step):
    O = vT + 6
    f = gelu_epi(acc, acc + 8, 8, O)
    f(f'buffer_store_dwordx4 {vr(O, 4)}, v{vL16}, {srd(SWS)}, s{sH[step]} offen {ST}', tag=f'h{step}')
    return f

def phi_front(f, A):
    B = vT + 6
    for k in range(8): f(f'v_cvt_pk_bf16_f32 v{B+k}, v{A+2*k}, v{A+2*k+1}')
    f(f'v_mfma_f32_32x32x16_bf16 {vr(A,16)}, {vr(vPHI,4)}, {vr(B,4)}, 0')
    f(f'v_mfma_f32_32x32x16_bf16 {vr(A,16)}, {vr(vPHI+4,4)}, {vr(B+4,4)}, {vr(A,16)}')

def phi_exp(f, A, EP):
    MX, MN, T0, T1 = vT, vT + 1, vT + 2, vT + 3
    f(f'v_max3_f32 v{MX}, v{A}, v{A+1}, v{A+2}')
    f(f'v_max3_f32 v{MN}, -v{A}, -v{A+1}, -v{A+2}')
    f(f'v_max3_f32 v{T0}, v{A+3}, v{A+4}, v{A+5}')
    f(f'v_max3_f32 v{T1}, -v{A+3}, -v{A+4}, -v{A+5}')
    for k in (6, 10):
        f(f'v_max3_f32 v{MX}, v{MX}, v{A+k}, v{A+k+1}')
        f(f'v_max3_f32 v{MN}, v{MN}, -v{A+k}, -v{A+k+1}')
        f(f'v_max3_f32 v{T0}, v{T0}, v{A+k+2}, v{A+k+3}')
        f(f'v_max3_f32 v{T1}, v{T1}, -v{A+k+2}, -v{A+k+3}')
    f(f'v_max_f32 v{MX}, v{MX}, v{T0}')
    f(f'v_max_f32 v{MN}, v{MN}, v{T1}')
    f(f'v_permlane32_swap_b32 v{MX}, v{MN}')
    f(f'v_max_f32 v{MX}, v{MX}, v{MN}')
    f(f'v_mul_f32 v{MX}, v{vRL}, v{MX}')
    f(f'v_mov_b32 v{MN}, v{MX}')
    f(f'v_permlane32_swap_b32 v{MX}, v{MN}')
    for i0 in range(0, 14, 2):
        for i in (i0, i0 + 1):
            f(f'v_fma_f32 v{EP+i}, v{A+i}, v{vRL}, -v{MX}')
            f(f'v_fma_f32 v{A+i}, -v{A+i}, v{vRL}, -v{MN}')
        for i in (i0, i0 + 1):
            f(f'v_exp_f32 v{EP+i}, v{EP+i}')
            f(f'v_exp_f32 v{A+i}, v{A+i}')

def k_epi(f, between):
    K = ACC[0]; EP = ACC[0] + 16
    f.p(GAP(2))
    phi_front(f, K)
    between(f)
    phi_exp(f, K, EP)
    S = [vT, vT + 1, vT + 2, vT + 3]
    f(f'v_add_f32 v{S[0]}, v{EP}, v{EP+1}\nv_add_f32 v{S[1]}, v{K}, v{K+1}')
    f(f'v_add_f32 v{S[2]}, v{EP+2}, v{EP+3}\nv_add_f32 v{S[3]}, v{K+2}, v{K+3}')
    for i in range(4, 14, 2):
        f(f'v_add_f32 v{S[0]}, v{S[0]}, v{EP+i}\nv_add_f32 v{S[1]}, v{S[1]}, v{K+i}')
        f(f'v_add_f32 v{S[2]}, v{S[2]}, v{EP+i+1}\nv_add_f32 v{S[3]}, v{S[3]}, v{K+i+1}')
    f(f'v_add_f32 v{S[0]}, v{S[0]}, v{S[2]}\nv_add_f32 v{S[1]}, v{S[1]}, v{S[3]}')
    f(f'v_permlane32_swap_b32 v{S[0]}, v{S[1]}')
    f(f'v_add_f32 v{S[0]}, v{S[0]}, v{S[1]}')
    f(f'v_mul_f32 v{S[0]}, v{S[0]}, v{vSD}')
    f(f'v_rcp_f32 v{S[0]}, v{S[0]}')
    f(f'v_mov_b32 v{S[1]}, v{S[0]}')
    f(f'v_permlane32_swap_b32 v{S[0]}, v{S[1]}')
    PB = vT + 6
    for sgn, src in ((0, EP), (1, K)):
        for j in range(4):
            n = 4 if j < 3 else 2
            for i in range(4 * j, 4 * j + n): f(f'v_mul_f32 v{src+i}, v{src+i}, v{S[sgn]}')
            o = PB + 8 * sgn + 2 * j
            f(f'v_cvt_pk_bf16_f32 v{o}, v{src+4*j}, v{src+4*j+1}')
            if j < 3: f(f'v_cvt_pk_bf16_f32 v{o+1}, v{src+4*j+2}, v{src+4*j+3}')
            else: f(f'v_mov_b32 v{o+1}, 0')
            f(f'ds_write_b64 v{vSW}, {vr(o, 2)} offset:{64*sgn + 16*j}', tag='scr')

vE = vT + 6
KPD = [22, 48]
KPLD = [f'buffer_load_dwordx4 {vr(KPD[k],4)}, v{18+k}, {srd(SWS)}, s{sKPR} offen sc1' for k in range(2)]

def vq_epi():
    f = Stream()
    V = ACC[1]; Q = ACC[1] + 16
    f.p(GAP(2))
    VB = vT + 14
    for k in range(8): f(f'v_cvt_pk_bf16_f32 v{VB+k}, v{V+2*k}, v{V+2*k+1}')
    f(f'v_lshrrev_b32 v{vT}, 16, v{vSD}')
    f(f'v_cndmask_b32 v{VB+6}, v{VB+6}, v{vT}, s[{sHI}:{sHI+1}]')
    f(f'v_cndmask_b32 v{VB+7}, v{VB+7}, 0, s[{sHI}:{sHI+1}]')
    for j in range(4): f(f'ds_write_b64 v{vSW}, {vr(VB+2*j, 2)} offset:{128 + 16*j}', tag='scr')
    f.p(DONE('scr'))
    phi_front(f, Q)
    f.p(SYNC('scrbar'))
    bufs = [V, vT + 6]
    D = [V + 12, vT + 18]
    def reads(kk):
        b = bufs[kk & 1]
        for rd in range(2):
            f(f'ds_read_b64_tr_b16 {vr(b+2*rd, 2)}, v{vSB} offset:{kk*7424 + rd*232}')
        for mt in range(2):
            for rd in range(2):
                f(f'ds_read_b64_tr_b16 {vr(b+4+4*mt+2*rd, 2)}, v{vSA} offset:{kk*7424 + rd*232 + mt*32}')
    reads(0); reads(1); f.p(GAP(1))
    for kk in range(4):
        b = bufs[kk & 1]
        for mt in range(2):
            f(f'v_mfma_f32_16x16x32_bf16 {vr(D[mt],4)}, {vr(b+4+4*mt,4)}, {vr(b,4)}, ' + ('0' if kk == 0 else vr(D[mt], 4)))
        if kk + 2 < 4: reads(kk + 2)
        f.p(GAP(1 if kk != 1 else 0))
    for mt in range(2):
        f(f'buffer_store_dwordx4 {vr(D[mt],4)}, v{vL16}, {srd(SWS)}, s{sKPW} offen offset:{1024*mt} {ST}')
    f.p(DONE('kp'))
    f(f'''
    v_bfe_u32 v18, v0, 3, 3
    v_and_b32 v20, 7, v0
    v_lshlrev_b32 v18, 11, v18
    v_lshl_add_u32 v18, v20, 4, v18
    v_add_u32 v19, 0x4000, v18
    ''')
    kf_addr(f, 21, 22)
    f(f'''
    s_lshr_b32 s{sROT}, s{sB}, 1
    s_and_b32 s{sROT}, s{sROT}, s{sI}
    s_and_b32 s{sROT}, s{sROT}, 1
    s_cmp_eq_u32 s{sROT}, 1
    s_cselect_b32 s{sROT}, 5, 99
    ''')
    EP = V
    g = Stream(); phi_exp(g, Q, EP)
    for sgn, src in ((0, EP), (1, Q)):
        for k in range(8):
            if k < 7: g(f'v_cvt_pk_bf16_f32 v{vE+8*sgn+k}, v{src+2*k}, v{src+2*k+1}')
            else: g(f'v_mov_b32 v{vE+8*sgn+k}, 0')
    cut = int(len(g) * env('KPCUT', 0.75))
    f += g[:cut]
    f.p(SYNC('cfbar'))
    for l in KPLD: f(l)
    f += g[cut:]
    return f

RETRY = []
def check(c, name, loads, regs, T, pre=''):
    def mx(s):
        r = list(regs)
        s(f'v_max3_u32 v{T}, v{r[0]}, v{r[1]}, v{r[2]}'); r = r[3:]
        two = len(r) > 6
        if two: s(f'v_max3_u32 v{T+1}, v{r[0]}, v{r[1]}, v{r[2]}'); r = r[3:]
        k = 0
        while len(r) >= 2:
            t = T + (k & 1 if two else 0); k += 1
            s(f'v_max3_u32 v{t}, v{t}, v{r[0]}, v{r[1]}'); r = r[2:]
        if two and r: s(f'v_max3_u32 v{T}, v{T}, v{T+1}, v{r[0]}')
        elif two: s(f'v_max_u32 v{T}, v{T}, v{T+1}')
        elif r: s(f'v_max_u32 v{T}, v{T}, v{r[0]}')
        s(f'v_cmp_eq_u32 vcc, -1, v{T}')
    mx(c)
    c(f's_cbranch_vccnz R_{name}\nB_{name}:')
    r = Stream()
    r(f'R_{name}:\ns_mov_b32 s{sTMP2}, 0x8000\nL_{name}:\ns_sleep 6\n{pre}')
    for l in loads: r(l)
    r('s_waitcnt vmcnt(0)')
    mx(r)
    r(f's_cbranch_vccz B_{name}\ns_sub_u32 s{sTMP2}, s{sTMP2}, 1\ns_cmp_lg_u32 s{sTMP2}, 0\ns_cbranch_scc1 L_{name}\ns_branch B_{name}')
    RETRY.append(finish(r))

def main_loop(typ, LOOK=4):
    cfg = CFG[typ]; bars = cfg['bars']; S = STEPS[typ]
    uses = []
    for step in range(3):
        for q in range(7):
            for t in range(4):
                for part in range(S[step]['parts']):
                    acc = ACC[step & 1] + 16 * part
                    uses.append((7 * step + q, t, part, step, acc, q == 0 and t == 0, 4 * q + t))
    N = len(uses)
    slot_of = dict(cfg['init']); slot2 = {}
    A = dict(nxt=len(slot_of), free=[], freed=0, half=None)
    xread = 0; xfreed = 0; xcredit = 0.0
    steps = [Stream(), Stream(), Stream()]
    state = {'c': steps[0], 'xhi': False, 'u': 0}
    dq = []; issued_at = {k: -99 for k in slot_of}
    def xr(k):
        c = state['c']
        blk = k >> 2
        if blk >= 4 and not state['xhi']:
            for j in range(4): c(f'v_add_u32 v{vXA+j}, 0x10000, v{vXA+j}')
            state['xhi'] = True
        c(f'ds_read_b128 {vr(XF+4*k,4)}, v{vXA+(k&3)} offset:{(blk & 3)*16384}', tag=f'X{blk}')
        if k == 27: c.p(MARK('xissued'))
    def pop_dma(c=None):
        c = state['c'] if c is None else c
        slab, part = dq.pop(0)
        if isinstance(part, Stream):
            assert state['u'] >= N - 28 * S[2]['parts'] + S[2]['parts'] * (4 * int(slab - 21) + 4)
            c += part; return
        if slab >= 21:
            if slab == 21 and part == 0 and c is steps[1]: c.p(NEED('p2'))
            assert c is not steps[0]
            dma2(c, slab - 21, slot2[slab - 21], part)
        else:
            dma(c, typ, slab, slot_of[slab], part)
            if slab == 7: c.p(MARK('d6'))
        issued_at[slab] = state['u']
    def release(upto):
        while A['freed'] <= upto:
            f = A['freed']; sl = int(slot_of[f])
            held = 'holdslot' in cfg and cfg['holdslot'][0] == sl and f < 7
            if not any(int(v) == sl and m > f for m, v in slot_of.items()) and not held:
                A['free'].append(sl)
                if A['half'] is not None and int(A['half']) == sl: A['half'] = None
            A['freed'] += 1
    def allocate():
        while True:
            n = A['nxt']
            if n < 21:
                if S[n // 7]['dparts'] == 1 and A['half'] is not None:
                    slot_of[n] = A['half']; A['half'] = None
                elif A['free']:
                    slot_of[n] = A['free'].pop(0)
                    if S[n // 7]['dparts'] == 1: A['half'] = slot_of[n] + 0.5
                else: break
                for part in range(S[n // 7]['dparts']): dq.append((n, part))
            elif n < 30 and len(A['free']) >= 2:
                slot2[n - 21] = (A['free'].pop(0), A['free'].pop(0))
                for k in range(4): dq.append((n, k))
            else: break
            A['nxt'] += 1
    def barrier(n):
        nonlocal xfreed
        c = state['c']
        k = bars.index(n); upto = bars[k + 1] if k + 1 < len(bars) else 21
        while dq and dq[0][0] < upto: pop_dma()
        assert A['nxt'] >= upto, (typ, n, A['nxt'], upto)
        if os.environ.get('VERB'): print(typ, 'barrier', n, 'u', state['u'], 'ages', [state['u'] - issued_at[m] for m in range(n, upto)], 'queue', len(dq), 'next', A['nxt'])
        tags = [f'W{m}' for m in range(n, upto)]
        nx = xread // 4
        for blk in range(xfreed, nx): tags.append(f'X{blk}')
        if n == 0: c.p(WAITLDS())
        if n == cfg.get('scrbar'): tags.append('scr')
        if n == cfg.get('stbar'): tags.append('st')
        if n == cfg['clrbar']: tags.append('clr')
        if n == cfg.get('abar'): tags.append('h0')
        stamp(c, f'b{n}a', 3 if PROF == 3 else 9)
        c.p(WAITTAG(*tags))
        if n == cfg['cfbar']:
            c(f'v_cmp_gt_u32 vcc, v{vCF}, v{vCF+1}\ns_cbranch_vccnz R_CF{typ}\nB_CF{typ}:')
        if n == cfg.get('habar'): poll_check(c, 0, typ)
        stamp(c, f'b{n}b', 3 if PROF == 3 else 9)
        c('s_barrier')
        stamp(c, f'b{n}', 1 if n == 0 else (2 if PROF < 4 else 9))
        for key in ('scrbar', 'stbar', 'cfbar', 'clrbar', 'phibar'):
            if n == cfg.get(key): c.p(MARK(key))
        if xfreed < 7 and nx == 7: c.p(MARK('xdone'))
        for blk in range(xfreed, nx):
            if blk not in cfg['reserved']: A['free'].append(blk)
        xfreed = nx
        release(n - 2)
        A['free'] += cfg['relbar'].get(n, [])
        if 'holdslot' in cfg and cfg['holdslot'][1] == n: A['free'].append(cfg['holdslot'][0])
        allocate()
        if n == cfg.get('habar'):
            assert all(e[0] >= 21 for e in dq)
            for q in (0, 1): dq.extend([(21.5 + q, g) for g in hgroups(q)])
            dq.sort(key=lambda e: e[0])
    def newslab(u): return uses[u][1] == 0 and uses[u][2] == 0
    def reads(u):
        slab, t, part, step, acc, first, ks = uses[u]
        c = state['c']
        if newslab(u):
            c(f'v_add_u32 v{vC[0]}, {int(slot_of[slab]*16384)}, v{S[step]["pat"]}')
            if S[step]['parts'] == 2: c(f'v_xor_b32 v{vC[1]}, 32, v{vC[0]}')
        b = WF + 4 * (u % 6); ts = S[step]['ts']
        for rd in range(2):
            c(f'ds_read_b64_tr_b16 {vr(b+2*rd,2)}, v{vC[part]} offset:{part*8192 + t*ts + rd*ts//4}')
    def isbar(u): return u < N and newslab(u) and uses[u][0] in bars
    baru = [u for u in range(N) if isbar(u + LOOK)] + [N]
    prio_at = {}
    if env('PRIO', 1):
        prev = 0
        for e in baru:
            ln = e - prev
            if ln >= 8:
                for k in range(4): prio_at[prev + (k * ln) // 4] = 3 - k
            elif ln > 0: prio_at[prev] = 1; prio_at[prev + ln // 2] = 0
            prev = e
    barrier(0)
    for u in range(LOOK):
        reads(u)
        xr(xread); xread += 1
    lastd = -99
    def pace(u):
        if u < cfg['fast']: return 1
        nb = min(e for e in baru if e > u)
        return max(cfg['dgap'], min(cfg.get('maxgap', 4), (nb - 1 - lastd) // (len(dq) + 1)))
    extras = clears(typ); nex = len(extras)
    opregs = lambda u: [('v', r) for r in range(WF + 4 * (u % 6), WF + 4 * (u % 6) + 4)] + [('v', r) for r in range(XF + 4 * uses[u][6], XF + 4 * uses[u][6] + 4)]
    for u in range(N):
        slab, t, part, step, acc, first, ks = uses[u]
        state['c'] = steps[step]; state['u'] = u
        c = state['c']
        b = WF + 4 * (u % 6)
        bar_now = isbar(u + LOOK)
        if bar_now:
            c.p(WAITREG(opregs(u)))
            barrier(uses[u + LOOK][0])
        elif u + LOOK < N: reads(u + LOOK)
        xcredit += cfg['xrate']
        if not bar_now:
            while xcredit >= 1 and xread < 28:
                xr(xread); xread += 1; xcredit -= 1
        assert step > 0 or xread > ks
        if isbar(u + 1 + LOOK):
            n = uses[u + 1 + LOOK][0]
            if n == cfg.get('scrbar'): c.p(NEED('scr'))
            if n == cfg.get('stbar'): c.p(NEED('st'))
            if n == cfg['clrbar']: assert not extras; c.p(NEED('p2'))
            if n == cfg.get('abar') and c is steps[1]: c.p(NEED('hA'))
            if typ == 'H' and n in cfg['relbar']: c.p(NEED('kp'))
            c.p(NOFILL())
        if env('W2WAIT', 1) and u % 2 == 1 and u + 1 < N and xread == 28: c.p(WAITREG(opregs(u) + opregs(u + 1)))
        c(f'v_mfma_f32_32x32x16_bf16 {vr(acc,16)}, {vr(b,4)}, {vr(XF+4*ks,4)}, ' + ('0' if first else vr(acc, 16)))
        if u in prio_at: c(f's_setprio {prio_at[u]}')
        if bar_now:
            reads(u + LOOK)
            if uses[u + LOOK][0] == cfg['clrbar']:
                c(f'buffer_atomic_add v{vCF+1}, v{vCF}, {srd(SDBG)}, 0 offen sc1')
            if uses[u + LOOK][0] == cfg['cfbar']: flag_setup(c)
            if uses[u + LOOK][0] == cfg.get('abar'): arrive(c, 0)
        elif not isbar(u + 1 + LOOK):
            if extras and u >= cfg['clr0'] + cfg['clrgap'] * (nex - len(extras)):
                c += extras.pop(0)
            elif dq and u - lastd >= pace(u):
                pop_dma(); lastd = u
        if typ == 'F' and u == env('PFW2U', 45): w2_prefetch(c)
        if u == cfg['pollA']: poll(c, 0)
        if u == cfg['pollu']:
            c(f'''
            v_lshlrev_b32 v{vCF}, 6, v0
            buffer_load_dword v{vCF+1}, v{vCF}, {srd(SDBG)}, 0 offen sc1
            v_cmp_gt_u32 vcc, 4, v0
            v_cndmask_b32 v{vCF}, 0, 32, vcc
            ''')
    RETRY.append(f'''R_CF{typ}:
    s_mov_b32 s{sTMP2}, 0x8000
L_CF{typ}:
    s_sleep 40
    v_lshlrev_b32 v{vCF+1}, 6, v0
    buffer_load_dword v{vCF+1}, v{vCF+1}, {srd(SDBG)}, 0 offen sc1
    s_waitcnt vmcnt(0)
    v_cmp_gt_u32 vcc, v{vCF}, v{vCF+1}
    s_cbranch_vccz B_CF{typ}
    s_sub_u32 s{sTMP2}, s{sTMP2}, 1
    s_cmp_lg_u32 s{sTMP2}, 0
    s_cbranch_scc1 L_CF{typ}
    s_branch B_CF{typ}''')
    state['u'] = N
    return steps, dict(dq=dq, pop=pop_dma, release=release, allocate=allocate, slot2=slot2, A=A)

def sprinkle(base, groups):
    out = Stream(); n = len(base); k = 0
    for i, ins in enumerate(base):
        while k < len(groups) and (k + 0.3) * n / max(len(groups), 1) <= i:
            out += groups[k]; k += 1
        out.append(ins)
    for g in groups[k:]: out += g
    return out

def phase2(c, typ, M, tail):
    HF = XF; ACF = ACC[0]; ACS = ACC[1]
    vP2 = 2; vRW = [15, 16, 17, 18]; vRR = [19, 20]; vXO = 21; XR = 22; TC = 26
    slot2 = M['slot2']; dq = M['dq']
    def dgroups(upto):
        gs = []
        while dq and dq[0][0] - 21 <= upto:
            g = Stream(); M['pop'](g); gs.append(g)
        return gs
    c('s_setprio 0')
    stamp(c, 'main')
    if typ == 'H':
        a, b = KPD
        check(c, 'KP', KPLD, list(range(a, a + 4)) + list(range(b, b + 4)), TC)
        for k in range(4): c(f'v_add_f32 v{a+k}, v{a+k}, v{b+k}')
        for k in range(4): c(f'v_add_f32_dpp v{a+k}, v{a+k}, v{a+k} row_ror:8 row_mask:0xf bank_mask:0xf')
        c(f'''
        v_permlane16_swap_b32 v{a}, v{a+1}
        v_permlane16_swap_b32 v{a+2}, v{a+3}
        v_add_f32 v{a}, v{a}, v{a+1}
        v_add_f32 v{a+2}, v{a+2}, v{a+3}
        v_permlane32_swap_b32 v{a}, v{a+2}
        v_add_f32 v{a}, v{a}, v{a+2}
        v_cmp_eq_u32 vcc, s{sROT}, v20
        v_cndmask_b32 v{a}, v{a}, 1.0, vcc
        v_mov_b32 v{a+1}, v{a}
        v_permlane16_swap_b32 v{a}, v{a+1}
        v_cvt_pk_bf16_f32 v{a}, v{a}, v{a+1}
        buffer_store_dword v{a}, v21, {srd(SWS)}, s{sKFW} offen {ST}
        ''')
        stamp(c, 'kf')
    early = 'habar' in CFG[typ]
    if not early: poll_check(c, 0, typ)
    c('s_barrier')
    stamp(c, 'bt')
    M['release'](20); M['allocate']()
    if os.environ.get('VERB'): print(typ, 'phase2 slots', slot2, 'queue', dq)
    KFR = hreg(6)
    KFLD = [f'buffer_load_dwordx4 {vr(KFR+4*k,4)}, v{vL16}, {srd(SWS)}, s{sKFR} offen offset:{1024*k} sc1' for k in range(4)]
    def oblock(s, name):
        AP = ACS; AM = ACS + 16; T = TC; O = KFR
        check(s, name, KFLD, list(range(KFR, KFR + 16)), TC)
        s(f'''
        v_mfma_f32_32x32x16_bf16 {vr(AP,16)}, {vr(KFR,4)}, {vr(vE,4)}, 0
        v_mfma_f32_32x32x16_bf16 {vr(AM,16)}, {vr(KFR+8,4)}, {vr(vE+8,4)}, 0
        v_mfma_f32_32x32x16_bf16 {vr(AP,16)}, {vr(KFR+4,4)}, {vr(vE+4,4)}, {vr(AP,16)}
        v_mfma_f32_32x32x16_bf16 {vr(AM,16)}, {vr(KFR+12,4)}, {vr(vE+12,4)}, {vr(AM,16)}
        v_rcp_f32 v{T}, v{AP+13}
        v_rcp_f32 v{T+1}, v{AM+13}
        v_mov_b32 v{T+2}, {hx(f2u(1e-6))}
        v_fmac_f32 v{T+2}, v{T}, v{AP+12}
        v_fmac_f32 v{T+2}, v{T+1}, v{AM+12}
        v_rcp_f32 v{T+2}, v{T+2}
        v_mul_f32 v{T}, v{T}, v{T+2}
        v_mul_f32 v{T+1}, v{T+1}, v{T+2}
        v_mov_b32 v{T+3}, v{T}
        v_mov_b32 v{T+4}, v{T+1}
        v_permlane32_swap_b32 v{T+3}, v{T}
        v_permlane32_swap_b32 v{T+4}, v{T+1}
        ''')
        for i in range(16): s(f'v_mul_f32 v{AP+i}, v{T}, v{AP+i}')
        for i in range(16): s(f'v_fmac_f32 v{AP+i}, v{T+1}, v{AM+i}')
        for k in range(8): s(f'v_cvt_pk_bf16_f32 v{vE+k}, v{AP+2*k}, v{AP+2*k+1}')
        s(f'''
        v_cndmask_b32 v{vE+6}, v{vE+6}, 0, s[{sHI}:{sHI+1}]
        v_cndmask_b32 v{vE+7}, v{vE+7}, 0, s[{sHI}:{sHI+1}]
        ''')
        s(f'''
        buffer_store_dwordx4 {vr(vE,4)}, v{vL16}, {srd(SWS)}, s{sO} offen {ST}
        buffer_store_dwordx4 {vr(vE+4,4)}, v{vL16}, {srd(SWS)}, s{sO} offen offset:1024 {ST}
        ''', tag='o')
    if typ == 'H':
        c(f's_cmp_eq_u32 s{sCT}, 7\ns_cbranch_scc1 KM_NOTILE')
        s = Stream(); s('KM_NOTILE:\ns_nop 7\ns_nop 7'); s += tail
        s('s_waitcnt vmcnt(0)\ns_barrier'); arrive(s, 2)
        for l in KFLD: s(l)
        oblock(s, 'KF2')
        s('s_waitcnt vmcnt(0)\ns_barrier'); arrive(s, 3)
        s('s_endpgm')
        RETRY.append(finish(s))
    g1 = dgroups(env('G1H', 2)) if early else hgroups(0)
    c += sprinkle(tail, g1)
    stamp(c, 'tail')
    T = TC
    su = Stream()
    su(f'''
    v_bfe_u32 v{T}, v0, 5, 1
    v_bfe_u32 v{T+1}, v0, 2, 2
    v_lshl_add_u32 v{T+1}, v{T}, 2, v{T+1}
    v_and_b32 v{T+2}, 3, v0
    v_lshlrev_b32 v{T+2}, 3, v{T+2}
    v_bfe_u32 v{T+3}, v0, 4, 1
    v_lshl_add_u32 v{T+2}, v{T+3}, 5, v{T+2}
    v_bfe_u32 v{T+3}, v0, 3, 1
    v_lshl_add_u32 v{T+2}, v{T+3}, 6, v{T+2}
    v_lshl_add_u32 v{T+1}, v{T+1}, 7, v{T+2}
    s_and_b32 s{sTMP}, s{sG2}, 1
    s_lshl_b32 s{sTMP}, s{sTMP}, 13
    v_add_u32 v{vP2}, s{sTMP}, v{T+1}
    v_and_b32 v{T+1}, 7, v0
    v_xor_b32 v{T+2}, v{T}, v{T+1}
    v_and_b32 v{T+3}, 31, v0
    v_bfe_u32 v{T}, v0, 6, 1
    v_lshl_add_u32 v{T+3}, v{T}, 5, v{T+3}
    v_lshlrev_b32 v{T+3}, 8, v{T+3}
    v_lshl_add_u32 v{vRW[0]}, v{T+2}, 4, v{T+3}
    v_lshrrev_b32 v{T}, 3, v0
    v_and_b32 v{T+2}, 7, v{T}
    v_lshlrev_b32 v{T+3}, 1, v{T+1}
    v_xor_b32 v{T+3}, v{T+3}, v{T+2}
    v_lshlrev_b32 v{T+3}, 4, v{T+3}
    v_lshl_add_u32 v{vRR[0]}, v{T}, 8, v{T+3}
    v_mul_u32_u24 v{vXO}, 896, v{T}
    v_lshl_add_u32 v{vXO}, v{T+1}, 4, v{vXO}
    ''')
    c += su
    covered = set()
    uses = [(r, cb) for r in range(36) for cb in range(2)]
    def reads(u):
        r, cb = uses[u]; q = r // 4
        if u % 8 == 0:
            c(f's_mul_i32 s{sTMP}, s{sG}, {(slot2[q][1]-slot2[q][0])*16384}\ns_add_u32 s{sTMP}, s{sTMP}, {slot2[q][0]*16384}')
            c(f'v_add_u32 v{vC[0]}, s{sTMP}, v{vP2}\nv_xor_b32 v{vC[1]}, 64, v{vC[0]}')
        b = WF + 4 * (u % 6)
        for rd in range(2):
            row = 16 * (r % 4) + 8 * rd if r < 28 else 28 * ((r % 4) >> 1) + 16 * (r & 1) + 8 * rd
            c(f'ds_read_b64_tr_b16 {vr(b+2*rd,2)}, v{vC[cb]} offset:{row*128}')
    def part_addr(slots):
        c(f'''
        s_cmp_lt_u32 s{sW}, 4
        s_cselect_b32 s{sTMP}, {slots[0]}, {slots[2]}
        s_cselect_b32 s{sTMP2}, {slots[1]}, {slots[3]}
        s_bitcmp1_b32 s{sW}, 1
        s_cselect_b32 s{sTMP}, s{sTMP2}, s{sTMP}
        s_lshl_b32 s{sTMP}, s{sTMP}, 14
        v_add_u32 v{vRW[0]}, s{sTMP}, v{vRW[0]}
        ''')
        for j in range(1, 4): c(f'v_xor_b32 v{vRW[j]}, {32*j}, v{vRW[0]}')
    def pwrite(acc):
        for cb in range(2):
            for j in range(4):
                c(f'ds_write_b128 v{vRW[j]}, {vr(acc+16*cb+4*j,4)} offset:{cb*128}', tag='pw')
    def pread(dst, slots):
        for p in range(4):
            c(f'v_add_u32 v{TC}, {slots[p]*16384}, v{vRR[0]}\nv_xor_b32 v{TC+1}, 16, v{TC}')
            for k in range(2): c(f'ds_read_b128 {vr(dst+8*p+4*k,4)}, v{TC+k}')
    def psum(dst):
        for i in range(8): c(f'v_add_f32 v{dst+i}, v{dst+i}, v{dst+8+i}')
        for i in range(8): c(f'v_add_f32 v{dst+16+i}, v{dst+16+i}, v{dst+24+i}')
        for i in range(8): c(f'v_add_f32 v{dst+i}, v{dst+i}, v{dst+16+i}')
    FSR = hreg(2); SS = hreg(4)
    st = dict(nread=0, done=-1, freed=-1)
    def ahead(u):
        while st['nread'] < 72 and st['nread'] <= u + 4 and st['nread'] // 8 in covered: reads(st['nread']); st['nread'] += 1
    def compute(q):
        for u in range(8 * q, 8 * q + 8):
            r, cb = uses[u]
            ahead(u); assert st['nread'] > u
            acc = (ACF if r < 28 else ACS) + 16 * cb
            first = r == 0 or r == 28
            c(f'v_mfma_f32_32x32x16_bf16 {vr(acc,16)}, {vr(WF+4*(u%6),4)}, {vr(hreg(q)+4*(r%4),4)}, ' + ('0' if first else vr(acc, 16)))
        st['done'] = q
    def units(lst):
        g = []
        for o in lst:
            k, a = o[0], o[1:]
            if k == 'W': g += dgroups(int(a)); assert int(a) in slot2
            elif k == 'h':
                assert int(a) < 7 or st['done'] >= int(a) - 7
                g += hgroups(int(a))
            elif o == 'K': g += [Stream()(l) for l in KFLD]
            elif k == 'P': t = Stream(); poll(t, int(a)); g.append(t)
            elif k == 'x': g.append(Stream()(f'buffer_load_dwordx4 {vr(XR,4)}, v{vXO}, {srd(SXO)}, 0 offen'))
            else: raise ValueError(o)
        return g
    def silu(f):
        for i in range(8): f(f'v_add_f32 v{FSR+i}, v{FSR+i}, v{FSR+8+i}')
        for i in range(8): f(f'v_add_f32 v{FSR+16+i}, v{FSR+16+i}, v{FSR+24+i}')
        for i in range(8): f(f'v_add_f32 v{FSR+i}, v{FSR+i}, v{FSR+16+i}')
        for i in range(8): f(f'v_mul_f32 v{FSR+8+i}, {hx(f2u(-LOG2E))}, v{FSR+i}')
        for i in range(8): f(f'v_exp_f32 v{FSR+8+i}, v{FSR+8+i}')
        for i in range(8): f(f'v_add_f32 v{FSR+8+i}, 1.0, v{FSR+8+i}')
        for i in range(8): f(f'v_rcp_f32 v{FSR+8+i}, v{FSR+8+i}')
        for i in range(8): f(f'v_mul_f32 v{FSR+i}, v{FSR+i}, v{FSR+8+i}')
        for kk in range(4):
            f(f'v_lshlrev_b32 v{FSR+8+2*kk}, 16, v{XR+kk}\nv_and_b32 v{FSR+9+2*kk}, 0xffff0000, v{XR+kk}')
    PS = []
    SCRIPT = {
        'F': 'h1 T B0,1,2 A1 C0:W3 C1:W4 B W5 P1 W6 K1 B3,4 h2 h3 C2:h4,P2 C3 B C4:W7,W8 K2 B5,6 h5 h6 x P3 C5 K3 B C6:h7 X:h8 B7,8 S',
        'H': 'P1 B0,1 C0:K,W3 T B A2 K1 B C1:h2,h3 O:W4,h4,P2 B2,3 C2:W5 To K2 B4 A3 C3:h5,W6 B5 C4:h6,W7,P3 B6 C5:W8,x K3 B C6:h7 X:h8 B7,8 S',
    }
    nb = 0
    for op in os.environ.get('SCRIPT' + typ, SCRIPT[typ]).split():
        op, _, un = op.partition(':')
        k, a = op[0], op[1:]
        gs = units(un.split(',')) if un else None
        n0 = len(c)
        if k == 'C': compute(int(a))
        elif k in 'WhPx' or op == 'K':
            for g in units([op]): c += g
        elif k == 'B':
            cov = [int(x) for x in a.split(',')] if a else []
            stamp(c, f'p{nb}a', 4)
            c.p(WAITTAG('pw', *[f'V{m}' for m in cov]))
            c('s_barrier'); stamp(c, f'p{nb}', 2 if PROF != 3 else 9); nb += 1
            covered |= set(cov)
            while st['freed'] < st['done']:
                st['freed'] += 1; M['A']['free'] += list(slot2[st['freed']])
            M['allocate']()
            ahead(8 * (st['done'] + 1) - 1)
        elif k == 'K': poll_check(c, int(a), typ)
        elif k == 'T': c.p(WAITTAG(*(['o'] if a else ['h1', 'h2'])))
        elif k == 'A': arrive(c, int(a))
        elif k == 'O':
            oblock(c, 'KF')
            n0 = next(i for i in range(n0, len(c)) if isinstance(c[i], I) and c[i].kind == 'label') + 1
        elif k == 'X':
            assert st['freed'] >= 5
            PS = list(slot2[4]) + list(slot2[5])
            part_addr(PS); n0 = len(c); pwrite(ACF)
        elif k == 'S':
            pread(FSR, PS)
            n0 = len(c); compute(7); compute(8)
            f = Stream(); silu(f)
            m = Stream(c[n0:]); del c[n0:]
            c += interleave(m, f, 6.5)
        else: raise ValueError(op)
        if gs:
            m = Stream(c[n0:]); del c[n0:]
            if k == 'C':
                per = len(gs) / 8.0; cnt = 0; done = 0
                for ins in m:
                    c.append(ins)
                    if isinstance(ins, I) and ins.kind == 'mfma':
                        cnt += 1
                        while done < len(gs) and done + 0.5 <= cnt * per + (0.5 if per < 1 else 0): c += gs[done]; done += 1
                for g in gs[done:]: c += g
            else: c += sprinkle(m, gs)
        if k in 'CO': stamp(c, op, 4 if k == 'C' else 1)
    stamp(c, 'mm')
    c('s_barrier')
    pwrite(ACS)
    c.p(WAITTAG('pw')); c('s_barrier')
    pread(SS, PS)
    psum(SS)
    for i in range(8): c(f'v_fmac_f32 v{FSR+8+i}, v{SS+i}, v{FSR+i}')
    for k in range(4): c(f'v_cvt_pk_bf16_f32 v{XR+k}, v{FSR+8+2*k}, v{FSR+9+2*k}')
    c(f'buffer_store_dwordx4 {vr(XR,4)}, v{vXO}, {srd(SOUT)}, 0 offen')
    stamp(c, 'end')

def strip(c): return Stream([x for x in c if not (isinstance(x, P) and x.kind == 'slotend')])

def gen():
    text = []
    top = Stream()
    top(f'''
    s_cmp_ge_u32 s2, 256
    s_cbranch_scc1 KM_EXIT
    s_load_dwordx8 s[4:11], s[0:1], 0
    s_load_dwordx8 s[12:19], s[0:1], 32
    s_load_dwordx4 s[20:23], s[0:1], 64
    s_load_dwordx2 s[24:25], s[0:1], 80
    {'s_memtime s[66:67]' if PROF else ''}
    {'s_memrealtime s[92:93]' if PROF else ''}
    ''')
    top_common(top)
    top('s_bitcmp1_b32 s2, 5\ns_cbranch_scc1 KM_H')
    names = {}
    fs0 = (FS['n'], list(FS['names']))
    for typ in 'FH':
        FS['n'] = fs0[0]; FS['names'] = list(fs0[1])
        c = Stream(top)
        prologue(c, typ)
        steps, M = main_loop(typ)
        bud = CFG[typ]['bud']
        f0 = Stream()
        if typ == 'F':
            f0.p(SYNC('d6')); p2_setup(f0, typ)
            f0.p(SYNC('xdone')); stat_put(f0); f0.p(DONE('st'))
            f1 = Stream(); f1.p(DONE('st')); f1.p(DONE('p2')); stat_get(f1, typ); f1 += gelu_du(ACC[0], 0)
            c += interleave(steps[0], f0, bud[0])
            c += interleave(steps[1], f1, bud[1])
            c += interleave(steps[2], Stream([GAP(2)]) + gelu_du(ACC[1], 1), bud[2])
            tail = gelu_half(ACC[0], 2)
        else:
            f0.p(SYNC('phibar')); phi_load(f0); f0.p(SYNC('d6')); p2_setup(f0, typ); f0.p(SYNC('xissued')); stat_get(f0, typ)
            f1 = Stream(); f1.p(DONE('p2')); k_epi(f1, lambda f: f.p(GAP(2)))
            c += interleave(steps[0], f0, bud[0])
            c += interleave(steps[1], f1, bud[1])
            c += interleave(steps[2], vq_epi(), bud[2])
            tail = gelu_du(ACC[0], 2, O=WF)
        phase2(c, typ, M, tail)
        prof_out(c, typ)
        c('s_endpgm')
        full = finish(strip(c)).split('\n')
        idx = next(k for k, l in enumerate(full) if 's_cbranch_scc1 KM_H' in l)
        if typ == 'F': text += full
        else: text += ['KM_H:'] + full[idx + 1:]
        text += RETRY; RETRY.clear()
        names[typ] = list(FS['names'])
    text += ['KM_EXIT:', '    s_endpgm']
    return '\n'.join(text).replace('KM_SETUP:', setup_block('H') + '\n' + setup_block('F')), names

if __name__ == '__main__':
    import sys, json
    NAME = KN[:-7]
    hdr = open(f'cdna_kernels/{NAME}.s.ref').read().split('; Override launch')[0]
    body, names = gen()
    s = hdr + '; @launch grid=(256,1,1) block=(512,1,1) lds=163840\n'
    if PROF: s += '; STAMPS ' + json.dumps(names) + '\n'
    s += '.amdgcn_target "amdgcn-amd-amdhsa--gfx950"\n.text\n' + kernel(KN, body)
    out = sys.argv[1] if len(sys.argv) > 1 else f'cdna_kernels/{NAME}.s'
    open(out, 'w').write(s)
    print('wrote', out, len(s.split('\n')), 'lines')
```

```python
from asmlib import *
import struct, math, os

def f2u(x): return struct.unpack('<I', struct.pack('<f', x))[0]
def hx(x): return '0x%08x' % (x & 0xffffffff)
def env(k, d): return type(d)(os.environ.get(k, d))
LOG2E = 1.4426950408889634
GK0 = -2.0 * math.sqrt(2.0 / math.pi) * LOG2E
KN = 'recurrent_scan__linear_kernel_hedgehog__glu_gated_geglu__prompt_kernel'

HB = 0
KP = 0xA00000
KF = 0xC00000
CNT = 0xC10000
WS_END = 0xC12000
OOB = 0x7ff00000
PROF = env('PROF', 0); PRB = 0x1100000
if PROF: WS_END = 0x1200000
ST = 'sc0 sc1'

SX = 28; SW = [[32, 36], [40, 44], [48, 52]]; SWS = 56; SDBG = 60; SPHI = 64
sW, sB, sG, sI, sJ, sT, sROT, sM0 = 68, 69, 70, 71, 72, 73, 74, 75
sKA = 76; sXO = 76; sKB = 83
sH = [97, 98, 99]
sTMP = 26; sTMP2 = 27; sHI = 100
sO = 90; sKPW = 91; sKPR = 92; sKFW = 93; sKFR = 96
SWD = 32; SWO = 36; SXO = 28; SOUT = 64
sWB = [6, 7, 8, 9]; sHB = [14, 15, 16, 17]; sG2 = 22; sM2 = 23; sCT = 24; sMT = 25; sD = 3
def srd(n): return f's[{n}:{n+3}]'

vL16 = 1; vDA = [2, 3]; vDB = [4, 5]; vPDU = 6; vPX = 7; vC = [8, 9]; vK0 = 10; vXA = 11
vC1 = 11; vSD2 = 12; vRL = 13; vSD = 14
vSW = 15; vSA = 16; vSB = 17; vPHI = 18; vT = 26; WF = 56; ACC = [80, 112]; XF = 144
vLS = 44
vCF = 52
vD2 = 54; vPR = 55; vRQ = 5
SCR = 49152
MISC = 155648
STAT = {'F': 110592, 'H': MISC + 4096}
def vr(a, n): return f'v[{a}:{a+n-1}]'

def mk_srd(c, d, plo, off_sgpr, size):
    if off_sgpr is None:
        c(f's_mov_b32 s{d}, s{plo}\ns_mov_b32 s{d+1}, s{plo+1}\ns_mov_b32 s{d+2}, {size}')
    else:
        c(f's_add_u32 s{d}, s{plo}, s{off_sgpr}\ns_addc_u32 s{d+1}, s{plo+1}, 0\ns_sub_u32 s{d+2}, {size}, s{off_sgpr}')
    c(f's_mov_b32 s{d+3}, 0x20000')

FS = {'n': 0, 'names': []}
def stamp(c, name, lvl=1):
    if PROF < lvl: return
    rot = [12, 94, 0]; n = FS['n']
    if n >= 2: c(f'v_writelane_b32 v{vPR}, s{rot[(n-2) % 3]}, {n}')
    c(f'{"s_memrealtime" if env("RT", 0) else "s_memtime"} s[{rot[n % 3]}:{rot[n % 3]+1}]'); FS['n'] += 1; FS['names'].append(name)
def prof_out(c, typ):
    if not PROF: return
    c('s_waitcnt vmcnt(0)')
    stamp(c, 'drain'); stamp(c, 'x'); stamp(c, 'x')
    c(f's_memrealtime s[12:13]\ns_waitcnt lgkmcnt(0)\nv_writelane_b32 v{vPR}, s12, 63')
    c(f's_lshl_b32 s3, s2, 3\ns_add_u32 s3, s3, s{sW}\ns_lshl_b32 s3, s3, 8\ns_add_u32 s3, s3, {PRB}')
    c(f'v_and_b32 v144, 63, v0\nv_lshlrev_b32 v144, 2, v144')
    c(f'buffer_store_dword v{vPR}, v144, {srd(SWS)}, s3 offen')

DU = dict(parts=2, D=vDA, K=sKA, pat=vPDU, dparts=2, ts=2048)
STEPS = {
    'F': [DU, DU, DU],
    'H': [dict(parts=1, D=vDB, K=sKB, pat=vPX, dparts=1, ts=2048), dict(parts=2, D=vDB, K=sKB, pat=vPX, dparts=2, ts=2048), dict(parts=1, D=vDA, K=sKA, pat=vPDU, dparts=1, ts=1024)],
}
CFG = {
    'F': dict(bars=eval(env('FBARS', '[0,1,2,3,4,5,7,8,10,12,14,16,18,20]')), dgap=2, xrate=env('XRF', 0.6), init={0: 7, 1: 8, 2: 9}, reserved={6}, fast=env('FASTF', 14),
              stbar=8, relbar={10: [6]}, clrbar=None, clr0=env('CLR0F', 62), clrgap=env('CLRGF', 8), pollu=env('POLLUF', 98), cfbar=14, abar=env('ABAR', 14), pollA=env('POLLAF', 128), habar=env('HABAR', 18),
              ring=env('RINGF', 5), w2bar=env('W2BAR', 10), bud=[2, env('BF1', 5.5), env('BF2', 4.5)]),
    'H': dict(bars=eval(env('HBARS', '[0,2,4,5,7,8,9,10,11,12,13,14,16,18]')), dgap=2, maxgap=env('MAXGAP', 4), xrate=1.2, init={0: 7, 1: 7.5, 2: 8, 3: 8.5, 4: 9},
              reserved={3, 4, 5, 6}, scrbar=16, phibar=2, fast=env('FASTH', 10), relbar={}, holdslot=(9, 8), clrbar=8, clr0=8, clrgap=5,
              pollu=env('POLLUH', 84), cfbar=18, pollA=-1, ring=99, w2bar=99, bud=[3.5, env('BH1', 4.8), env('BH2', 5.5)]),
}

def dma_off(c, stride, D, L, T, clip):
    c(f'''
    v_lshrrev_b32 v{T}, 3, v0
    v_bfe_u32 v{T+1}, v{L}, 4, 1
    v_and_b32 v{T+2}, 7, v{L}
    v_lshlrev_b32 v{T+1}, 2, v{T+1}
    v_xor_b32 v{T+1}, v{T+1}, v{T+2}
    v_xor_b32 v{T+2}, 2, v{T+1}
    v_mul_u32_u24 v{T}, {stride}, v{T}
    ''')
    if clip: c(f'v_min_u32 v{T+1}, 6, v{T+1}\nv_min_u32 v{T+2}, 6, v{T+2}')
    c(f'v_lshl_add_u32 v{D[0]}, v{T+1}, 4, v{T}\nv_lshl_add_u32 v{D[1]}, v{T+2}, 4, v{T}')

def tr_pat(c, kind, L, T):
    c(f'''
    v_lshrrev_b32 v{T}, 5, v{L}
    v_bfe_u32 v{T+1}, v{L}, 2, 2
    v_lshl_add_u32 v{T}, v{T}, 3, v{T+1}
    v_and_b32 v{T+1}, 3, v{L}
    v_lshlrev_b32 v{T+1}, 3, v{T+1}
    v_bfe_u32 v{T+2}, v{L}, 4, 1
    ''')
    if kind in ('du', 'head'):
        c(f'''
        v_bfe_u32 v{T+3}, v{L}, 3, 1
        v_lshlrev_b32 v{T+3}, 6, v{T+3}
        v_lshl_add_u32 v{T+1}, v{T+2}, 5, v{T+1}
        s_mul_i32 s{sTMP}, s{sG}, {64 if kind == 'du' else 56}
        v_add_u32 v{T+1}, s{sTMP}, v{T+1}
        v_xor_b32 v{T+1}, v{T+1}, v{T+3}
        v_lshl_add_u32 v{vPDU if kind == 'du' else vPX}, v{T}, 7, v{T+1}
        ''')
    else:
        c(f'''
        v_xor_b32 v{T+3}, s{sG}, v{T+2}
        v_lshl_add_u32 v{T+1}, v{T+3}, 5, v{T+1}
        v_lshl_add_u32 v{T+1}, v{T+2}, 12, v{T+1}
        v_lshl_add_u32 v{vPDU}, v{T}, 6, v{T+1}
        ''')

def dma(c, typ, slab, slot, part, so=None):
    step, q = divmod(slab, 7); S = STEPS[typ][step]
    c(f's_add_u32 m0, s{sM0}, {int(slot*16384) + part*8192}')
    if so is None: so = S['K'] + q
    c.p(P('slotend'))
    c(f'buffer_load_dwordx4 v{S["D"][part]}, {srd(SW[step][part])}, s{so} offen lds', tag=f'W{slab}')

sW2 = 83; sHD = 84; sV = sJ
def w2_consts(q):
    if q == 4: b, o, d = 1, 0, 0
    elif q < 7:
        du, par = {0: (0, 0), 1: (0, 1), 2: (1, 0), 3: (1, 1), 5: (2, 0), 6: (2, 1)}[q]
        b, o, d = 0, 768 * par + 64 * du, 768 * (1 - 2 * par)
    else: b, o, d = 3, q - 7, 1 - 2 * (q - 7)
    return b, o, d * env('PARITY', 1)

def dma2(c, q, slots, k):
    b, off, d = w2_consts(q)
    m = 896 if q < 7 else 56 * 896
    if k == 0:
        c(f's_mul_i32 s{sMT}, s{sG}, {(slots[1]-slots[0])*16384}\ns_add_u32 s{sMT}, s{sMT}, s{sM2}')
        c(f's_mul_i32 s{sW2}, s{sV}, {d*m}\ns_add_u32 s{sW2}, s{sW2}, s{sWB[b]}')
    c(f's_add_u32 m0, s{sMT}, {slots[0]*16384 + k*1024}')
    c(f's_add_u32 s{sD}, s{sW2}, {off*m + 8*k*896}')
    c(f'buffer_load_dwordx4 v{vD2}, {srd(SWD if q < 7 else SWO)}, s{sD} offen lds', tag=f'V{q}')

def xloads(c, g, tag=None):
    for q in range(7):
        c(f'buffer_load_dwordx4 {vr(80 + 28*g + 4*q, 4)}, v{28+g}, {srd(SX)}, s{sXO+q} offen', tag)

LNC = f'''
    v_mov_b32 v56, 0x3f803f80
    v_mov_b32 v57, 0x3f803f80
    v_and_b32 v34, 1, v27
    v_lshlrev_b32 v35, 4, v34
    v_mov_b32 v36, 0x3f80
    v_lshlrev_b32 v36, v35, v36
    v_and_b32 v35, 2, v27
    v_cmp_eq_u32 s[62:63], 0, v35
    v_cmp_eq_u32 s[60:61], 0, v34
    v_cndmask_b32 v58, 0, v36, s[62:63]
    v_cndmask_b32 v59, v36, 0, s[62:63]
    v_bfe_u32 v36, v32, 1, 3
    v_xor_b32 v36, v36, v31
    v_lshlrev_b32 v36, 4, v36
    v_lshl_add_u32 v40, v32, 7, v36
    v_add_u32 v41, 0x10000, v40
    v_xor_b32 v42, 0x2000, v40
    v_xor_b32 v43, 0x2000, v41
    v_xor_b32 v33, 64, v32
    v_mul_u32_u24 v29, 896, v33
    v_lshl_add_u32 v29, v31, 4, v29
    v_lshlrev_b32 v{vL16}, 4, v27
    s_and_b32 s{sB}, s{sW}, 3
'''

def top_common(c):
    ROTC = {2: f's_lshl_b32 s{sT}, s{sT}, 1', 0: f's_mov_b32 s{sT}, 0', 1: f's_and_b32 s{sT}, s{sT}, 1\ns_mul_i32 s{sT}, s{sT}, 3', 3: 's_nop 0'}[env('ROTM', 0)]
    sST = sKB + 6; sCL = sKB + 5
    c(f'''
    s_getpc_b64 s[{SWS}:{SWS+1}]
    KM_PC:
    s_mov_b32 s{SWS+2}, KM_EXIT-KM_PC
    s_mov_b32 s{SWS+3}, 0x20000
    s_lshr_b32 s{sTMP}, s2, 3
    s_mul_i32 s{sTMP}, s{sTMP}, 1280
    v_add_u32 v35, 6, v0
    v_lshlrev_b32 v34, 7, v0
    v_lshrrev_b32 v35, 4, v35
    v_lshl_add_u32 v34, v35, 20, v34
    ''')
    c(f'buffer_load_dword v249, v34, {srd(SWS)}, s{sTMP} offen', 'raw')
    c(f'''
    v_lshrrev_b32 v26, 6, v0
    v_and_b32 v27, 63, v0
    v_readfirstlane_b32 s{sW}, v26
    s_bfe_u32 s{sROT}, s2, 0x20001
    s_lshr_b32 s{sT}, s2, 6
    s_lshl_b32 s{sI}, s{sROT}, 2
    s_add_u32 s{sI}, s{sI}, s{sT}
    {ROTC}
    s_add_u32 s{sROT}, s{sROT}, s{sT}
    s_and_b32 s{sT}, s2, 8
    s_lshr_b32 s{sT}, s{sT}, 1
    s_add_u32 s{sROT}, s{sROT}, s{sT}
    s_lshr_b32 s{sT}, s2, 2
    s_andn2_b32 s{sT}, s{sT}, 1
    s_add_u32 s{sT}, s{sT}, s{sW}
    s_and_b32 s{sT}, s{sT}, 15
    s_lshl_b32 s{sT}, s{sT}, 3
    s_lshl_b32 s{sTMP}, s{sROT}, 7
    ''')
    for q in range(7):
        if q: c(f's_add_u32 s{sTMP}, s{sXO+q-1}, 128')
        c(f'''
        s_cmp_ge_u32 s{sTMP}, 896
        s_cselect_b32 s{sTMP2}, 896, 0
        s_sub_u32 s{sXO+q}, s{sTMP}, s{sTMP2}
        ''')
    c(f'''
    v_lshrrev_b32 v30, 3, v27
    v_and_b32 v31, 7, v27
    v_add_u32 v32, s{sT}, v30
    v_mul_u32_u24 v28, 896, v32
    v_lshl_add_u32 v28, v31, 4, v28
    s_lshr_b32 s{sG}, s{sW}, 2
    s_lshl_b32 s{sM0}, s{sW}, 10
    s_and_b32 s{sJ}, s2, 1
    s_lshl_b32 s{sJ}, s{sJ}, 2
    s_bfe_u32 s{sT}, s2, 0x20003
    s_add_u32 s{sJ}, s{sJ}, s{sT}
    s_mul_i32 s{sH[0]}, s{sJ}, 192
    s_add_u32 s{sH[0]}, s{sH[0]}, 256
    s_lshl_b32 s{sTMP2}, s{sH[0]}, 1
    s_mul_i32 s{sH[1]}, s{sJ}, 112
    s_add_u32 s{sTMP}, s{sH[1]}, 896
    s_movk_i32 s{sST}, 3584
    s_bitcmp1_b32 s2, 5
    s_cselect_b32 s{sTMP2}, s{sTMP}, s{sTMP2}
    s_cselect_b32 s{sST}, 2688, s{sST}
    s_cselect_b32 s{sCL}, 6, 7
    v_lshrrev_b32 v34, 3, v0
    v_bfe_u32 v35, v27, 4, 1
    v_lshlrev_b32 v35, 2, v35
    v_xor_b32 v35, v35, v31
    v_xor_b32 v36, 2, v35
    v_mul_u32_u24 v34, s{sST}, v34
    v_min_u32 v35, s{sCL}, v35
    v_min_u32 v36, s{sCL}, v36
    v_lshl_add_u32 v{vDA[0]}, v35, 4, v34
    v_lshl_add_u32 v{vDA[1]}, v36, 4, v34
    v_mov_b32 v{vDB[0]}, v{vDA[0]}
    v_mov_b32 v{vDB[1]}, v{vDA[1]}
    s_lshr_b32 s{sCL}, s{sST}, 1
    s_mul_i32 s{sKB}, s{sXO}, s{sCL}
    s_lshl_b32 s{sKB+1}, s{sST}, 5
    s_add_u32 s{sKB+1}, s{sKB+1}, s{sKB}
    s_mul_i32 s{sST}, s{sST}, 448
    s_mul_i32 s{sTMP}, s{sI}, 114688
    s_bitcmp1_b32 s2, 5
    s_waitcnt lgkmcnt(0)
    s_cselect_b64 s[52:53], s[6:7], s[14:15]
    ''')
    if PROF: c(f'v_writelane_b32 v{vPR}, s66, 0\nv_writelane_b32 v{vPR}, s92, 1')
    mk_srd(c, SW[0][0], 52, sTMP2, f's{sST}')
    mk_srd(c, SW[0][1], 16, sTMP2, 448 * 3584)
    mk_srd(c, SX, 4, sTMP, 2048 * 896)
    c(f's_cmp_lg_u32 s{sG}, 0\ns_cbranch_scc1 KM_Y')
    if env('PFQ', 0): share_pf(c, SPHI, 6, 448 * 2688, 37, 2, 0, 34, 248, 'raw')
    for part in range(2):
        if part: c('s_bitcmp1_b32 s2, 5\ns_cbranch_scc1 KM_A')
        for k in range(2):
            c(f's_add_u32 m0, s{sM0}, {7*16384 + part*8192 + k*4096}')
            c(f'buffer_load_dwordx4 v{vDA[part]}, {srd(SW[0][part])}, s{sKB+k} offen lds', 'raw')
    c('KM_A:')
    xloads(c, 0, 'raw')
    c('KM_Y:')
    c(LNC)
    c('s_bitcmp1_b32 s2, 5\ns_cbranch_scc0 KM_SF\nKM_SETUP:\nKM_X0:')
    xloads(c, 0)
    c('KM_X1:')
    xloads(c, 1)
    stamp(c, 'g1', 2)
    for q in range(7): c(f's_mul_i32 s{sKB+q}, s{sXO+q}, 1344\ns_mul_i32 s{sKA+q}, s{sXO+q}, 1792')
    layernorm(c)
    stamp(c, 'ln')

def dma_both(c, typ, s, slot, part):
    so = STEPS[typ][0]['K'] + s
    dma(c, typ, s, slot, part, so=so)
    c(f's_add_u32 s{sD}, s{so}, {32 * (3584 if typ == "F" else 2688)}')
    dma(c, typ, s, slot + 0.25, part, so=sD)

def hreg(q): return XF + 16 * (q if q < 7 else q - 7)
def hpre(q):
    b, off, d = w2_consts(q); m = 64 if q < 7 else 4096
    return f's_mul_i32 s{sHD}, s{sV}, {d*m}\ns_add_u32 s{sHD}, s{sHD}, s{sHB[b]}\ns_add_u32 s{sHD}, s{sHD}, {off*m}'
def hloads(q): return [f'buffer_load_dwordx4 {vr(hreg(q)+4*t,4)}, v{vL16}, {srd(SWS)}, s{sHD} offen offset:{t*1024} sc1' for t in range(4)]
def hgroups(q):
    return [Stream()((hpre(q) + '\n' if t == 0 else '') + l) for t, l in enumerate(hloads(q))]

def prologue(c, typ):
    st0 = STEPS[typ][0]
    init = [(s, slot, part) for s, slot in CFG[typ]['init'].items() for part in range(st0['dparts']) if s > 0]
    c(f'v_lshlrev_b32 v{vLS+2}, 2, v32\nv_add_u32 v{vLS+2}, {STAT[typ]}, v{vLS+2}')
    if typ == 'H': stat_put(c)
    c(f's_cmp_lg_u32 s{sG}, 0\ns_cbranch_scc1 KM_B{typ}')
    c.p(BEGIN('old'))
    for n, (s, slot, part) in enumerate(init):
        dma_both(c, typ, s, slot, part)
        if typ == 'H' and n == 0:
            c(f's_mul_i32 s{sTMP}, s{sJ}, 3136')
            mk_srd(c, SPHI, 8, sTMP, 16 * 1568)
            c(f'''
            s_mul_i32 s{sTMP}, s{sW}, 800
            s_add_u32 m0, s{sTMP}, {MISC}
            s_mov_b32 exec_hi, 0x3ffff
            ''')
            c(f'buffer_load_dwordx4 v{vL16}, {srd(SPHI)}, s{sTMP} offen lds', tag='W2')
            c('s_mov_b32 exec_hi, -1')
    mall_prefetch(c, typ)
    c.p(END('old'))
    c(f'KM_B{typ}:\ns_nop 1')

def setup_block(typ):
    c = Stream()
    c(f'KM_S{typ}:')
    tr_pat(c, 'du' if typ == 'F' else 'head', 27, 34)
    c(f'''
    v_and_b32 v34, 31, v27
    s_lshl_b32 s{sTMP}, s{sB}, 5
    v_add_u32 v34, s{sTMP}, v34
    v_bfe_u32 v35, v27, 1, 3
    v_lshrrev_b32 v36, 5, v27
    v_xor_b32 v35, v35, v36
    v_lshlrev_b32 v35, 4, v35
    v_lshl_add_u32 v{vXA}, v34, 7, v35
    v_xor_b32 v{vXA+1}, 32, v{vXA}
    v_xor_b32 v{vXA+2}, 64, v{vXA}
    v_xor_b32 v{vXA+3}, 96, v{vXA}
    ''')
    if typ == 'H':
        c(f's_add_u32 s{sTMP2}, s{sH[1]}, 1792')
        mk_srd(c, SW[1][0], 6, sTMP2, 448 * 2688)
        mk_srd(c, SW[1][1], 6, sH[1], 448 * 2688)
    late_setup(c, typ)
    clear_prep(c, typ)
    c(f's_cmp_lg_u32 s{sG}, 0\ns_cbranch_scc1 KM_X0\ns_branch KM_X1')
    return finish(c)

def layernorm(c):
    M4 = 'v_mfma_f32_4x4x4_16b_bf16'
    SA = [60, 64]; QA = [68, 72]; CM = 76; DT = [136, 140, 144, 148]
    inv = hx(f2u(1.0 / 448))
    for g in range(2):
        R = 80 + 28 * g
        for d in range(14):
            if d == 1 and g == 0: stamp(c, 'x0')
            if d == 13 and g == 1: stamp(c, 'x1')
            a = d & 1
            c(f'{M4} {vr(SA[a],4)}, v[56:57], {vr(R+2*d,2)}, ' + ('0' if d < 2 else vr(SA[a], 4)))
            c(f'{M4} {vr(QA[a],4)}, {vr(R+2*d,2)}, {vr(R+2*d,2)}, ' + ('0' if d < 2 else vr(QA[a], 4)))
        S = SA[0]; Q = QA[0]
        c(f'v_add_f32 v{S}, v{S}, v{SA[1]}')
        for k in range(4): c(f'v_add_f32 v{Q+k}, v{Q+k}, v{QA[1]+k}')
        c(f'v_add_f32_dpp v{S}, v{S}, v{S} quad_perm:[1,0,3,2] row_mask:0xf bank_mask:0xf')
        c(f'v_cndmask_b32 v{Q}, v{Q+1}, v{Q}, s[60:61]\nv_cndmask_b32 v{Q+2}, v{Q+3}, v{Q+2}, s[60:61]')
        c(f'v_add_f32_dpp v{S}, v{S}, v{S} quad_perm:[2,3,0,1] row_mask:0xf bank_mask:0xf')
        c(f'v_cndmask_b32 v{Q}, v{Q+2}, v{Q}, s[62:63]')
        c(f'v_add_f32_dpp v{S}, v{S}, v{S} row_half_mirror row_mask:0xf bank_mask:0xf')
        c(f'''
        v_mul_f32 v{S}, {hx(f2u(-1.0 / 448))}, v{S}
        v_cvt_pk_bf16_f32 v{S+1}, v{S}, v{S}
        v_and_b32 v{CM}, 0xffff0000, v{S+1}
        v_and_b32 v{CM+1}, 0xffff0000, v{S+1}
        v_and_b32 v{CM+2}, 0xffff0000, v{S+1}
        v_and_b32 v{CM+3}, 0xffff0000, v{S+1}
        ''')
        def cen(d): c(f'{M4} {vr(DT[d&3],4)}, v[58:59], {vr(R+2*d,2)}, {vr(CM,4)}')
        cen(0); cen(1)
        for d in range(14):
            if d + 2 < 14: cen(d + 2)
            t = DT[d & 3]
            c(f'v_cvt_pk_bf16_f32 v{R+2*d}, v{t}, v{t+1}\nv_cvt_pk_bf16_f32 v{R+2*d+1}, v{t+2}, v{t+3}')
            if d & 1:
                q = d >> 1
                a, off = (40 + 2 * g, q * 16384) if q < 4 else (41 + 2 * g, (q - 4) * 16384)
                c(f'ds_write_b128 v{a}, {vr(R+4*q, 4)} offset:{off}')
        for dpp in ('quad_perm:[1,0,3,2]', 'quad_perm:[2,3,0,1]', 'row_half_mirror'):
            c(f'v_add_f32_dpp v{Q}, v{Q}, v{Q} {dpp} row_mask:0xf bank_mask:0xf')
        c(f'''
        v_mul_f32 v{Q}, {inv}, v{Q}
        v_fma_f32 v{Q}, -v{S}, v{S}, v{Q}
        v_max_f32 v{Q}, 0, v{Q}
        v_cvt_pk_bf16_f32 v{Q}, v{Q}, v{Q}
        v_and_b32 v{Q}, 0xffff0000, v{Q}
        v_add_f32 v{Q}, {hx(f2u(1e-5))}, v{Q}
        v_cvt_pk_bf16_f32 v{Q}, v{Q}, v{Q}
        v_and_b32 v{Q}, 0xffff0000, v{Q}
        v_sqrt_f32 v{Q}, v{Q}
        v_cvt_pk_bf16_f32 v{Q}, v{Q}, v{Q}
        v_and_b32 v{vLS+g}, 0xffff0000, v{Q}
        ''')

def stat_put(f):
    f(f'ds_write_b32 v{vLS+2}, v{vLS}', tag='st')
    f(f'v_xor_b32 v{vLS+2}, 256, v{vLS+2}')
    f(f'ds_write_b32 v{vLS+2}, v{vLS+1}', tag='st')

def stat_get(f, typ):
    f(f'''
    v_and_b32 v{vC1}, 31, v0
    s_lshl_b32 s{sTMP}, s{sB}, 7
    s_add_u32 s{sTMP}, s{sTMP}, {STAT[typ]}
    v_lshlrev_b32 v{vC1}, 2, v{vC1}
    v_add_u32 v{vC1}, s{sTMP}, v{vC1}
    ''')
    if typ == 'F': f.p(SYNC('stbar'))
    f(f'ds_read_b32 v{vSD}, v{vC1}')
    f.p(GAP(1))
    f(f'''
    v_rcp_f32 v{vRL}, v{vSD}
    v_mul_f32 v{vSD2}, v{vSD}, v{vSD}
    v_mul_f32 v{vK0}, {hx(f2u(GK0))}, v{vRL}
    v_mul_f32 v{vC1}, v{vRL}, v{vRL}
    v_mul_f32 v{vC1}, {hx(f2u(0.044715))}, v{vC1}
    v_mul_f32 v{vC1}, v{vK0}, v{vC1}
    v_mul_f32 v{vRL}, {hx(f2u(LOG2E))}, v{vRL}
    ''')

def kf_addr(c, A, T):
    c(f'''
    v_and_b32 v{T}, 7, v0
    v_bfe_u32 v{A}, v0, 5, 1
    v_lshlrev_b32 v{A}, 2, v{A}
    v_lshl_add_u32 v{A}, v{T}, 4, v{A}
    v_and_b32 v{T+1}, 24, v0
    v_lshlrev_b32 v{T+1}, 26, v{T+1}
    v_or_b32 v{A}, v{A}, v{T+1}
    ''')

def late_setup(c, typ):
    T = 34; L = 27
    if typ == 'F':
        c(f's_add_u32 s{sH[1]}, s{sH[0]}, 64\ns_lshl_b32 s{sTMP2}, s{sH[1]}, 1')
        mk_srd(c, SW[1][0], 14, sTMP2, 448 * 3584)
        mk_srd(c, SW[1][1], 16, sTMP2, 448 * 3584)
        c(f's_add_u32 s{sH[2]}, s{sH[0]}, 128\ns_lshl_b32 s{sTMP2}, s{sH[2]}, 1')
        mk_srd(c, SW[2][0], 14, sTMP2, 448 * 3584)
        mk_srd(c, SW[2][1], 16, sTMP2, 448 * 3584)
    else:
        c(f's_mov_b32 s{sHI}, 0\ns_mov_b32 s{sHI+1}, -1')
        c(f'''
        v_bfe_u32 v{T}, v{L}, 3, 2
        v_and_b32 v{T+1}, 3, v{L}
        v_lshl_add_u32 v{T}, v{T}, 2, v{T+1}
        v_bfe_u32 v{T+1}, v{L}, 2, 1
        v_mad_u32_u24 v{T}, v{T+1}, 14, v{T}
        v_min_u32 v{T}, 27, v{T}
        v_lshrrev_b32 v{T+1}, 5, v{L}
        v_mul_u32_u24 v{T+1}, 224, v{T+1}
        v_lshl_add_u32 v{T}, v{T}, 1, v{T+1}
        s_mul_i32 s{sTMP}, s{sG}, 1568
        s_add_u32 s{sTMP}, s{sTMP}, {MISC}
        v_add_u32 v47, s{sTMP}, v{T}
        ''')
        c(f'''
        s_lshl_b32 s{sH[2]}, s{sJ}, 5
        s_lshl_b32 s{sTMP2}, s{sJ}, 6
        s_cmp_eq_u32 s{sG}, 0
        s_cselect_b64 s[52:53], s[14:15], s[16:17]
        ''')
        mk_srd(c, SW[2][0], 52, sTMP2, 448 * 3584)
        c(f'''
        v_bfe_u32 v{T}, v0, 2, 6
        v_mul_u32_u24 v{T}, 3584, v{T}
        s_lshl_b32 s{sTMP}, s{sG}, 1
        v_and_b32 v{T+1}, 3, v{L}
        v_xor_b32 v{T+1}, s{sTMP}, v{T+1}
        v_lshl_add_u32 v{vDA[0]}, v{T+1}, 4, v{T}
        ''')
        tr_pat(c, 'half', L, T)
    mk_srd(c, SWS, 24, None, WS_END)
    c(f'''
    s_lshl_b32 s{sTMP}, s{sI}, 2
    s_add_u32 s{sTMP}, s{sTMP}, s{sB}
    s_mul_i32 s{sTMP2}, s{sTMP}, {144*1024}
    ''')
    for step in ([0, 1, 2] if typ == 'F' else [2]):
        c(f'''
        s_lshl_b32 s{sH[step]}, s{sH[step]}, 6
        s_add_u32 s{sH[step]}, s{sH[step]}, s{sTMP2}
        s_lshl_b32 s{sT}, s{sG}, {11 if STEPS[typ][step]['parts'] == 2 else 10}
        s_add_u32 s{sH[step]}, s{sH[step]}, s{sT}
        ''')
    if typ == 'H':
        c(f'''
        s_lshl_b32 s{sROT}, s{sJ}, 1
        s_add_u32 s{sROT}, s{sROT}, s{sG}
        s_lshl_b32 s{sO}, s{sROT}, 11
        s_add_u32 s{sO}, s{sO}, s{sTMP2}
        s_add_u32 s{sO}, s{sO}, {HB + 112*1024}
        s_lshl_b32 s{sKPR}, s{sROT}, 2
        s_add_u32 s{sKPR}, s{sKPR}, s{sB}
        s_lshl_b32 s{sKPR}, s{sKPR}, 15
        s_add_u32 s{sKPR}, s{sKPR}, {KP}
        s_lshl_b32 s{sTMP}, s{sI}, 11
        s_add_u32 s{sKPW}, s{sKPR}, s{sTMP}
        s_lshl_b32 s{sTMP}, s{sI}, 7
        s_add_u32 s{sKPR}, s{sKPR}, s{sTMP}
        s_lshl_b32 s{sKFR}, s{sROT}, 12
        s_add_u32 s{sKFR}, s{sKFR}, {KF}
        s_and_b32 s{sKFW}, s{sB}, 1
        s_lshl_b32 s{sKFW}, s{sKFW}, 1
        s_lshr_b32 s{sTMP}, s{sI}, 3
        s_add_u32 s{sKFW}, s{sKFW}, s{sTMP}
        s_lshl_b32 s{sKFW}, s{sKFW}, 10
        s_lshr_b32 s{sTMP}, s{sB}, 1
        s_lshl_b32 s{sTMP}, s{sTMP}, 8
        s_add_u32 s{sKFW}, s{sKFW}, s{sTMP}
        s_and_b32 s{sTMP}, s{sI}, 1
        s_lshl_b32 s{sTMP}, s{sTMP}, 7
        s_add_u32 s{sKFW}, s{sKFW}, s{sTMP}
        s_bfe_u32 s{sTMP}, s{sI}, 0x10001
        s_lshl_b32 s{sTMP}, s{sTMP}, 9
        s_add_u32 s{sKFW}, s{sKFW}, s{sTMP}
        s_bfe_u32 s{sTMP}, s{sI}, 0x10002
        s_lshl_b32 s{sTMP}, s{sTMP}, 3
        s_add_u32 s{sKFW}, s{sKFW}, s{sTMP}
        s_add_u32 s{sKFW}, s{sKFW}, s{sKFR}
        ''')
        c(f'''
        s_mul_i32 s{sTMP}, s{sG}, 29696
        s_add_u32 s{sTMP}, s{sTMP}, {SCR}
        s_lshl_b32 s{sTMP2}, s{sB}, 5
        v_and_b32 v{T}, 31, v{L}
        v_add_u32 v{T}, s{sTMP2}, v{T}
        v_mul_u32_u24 v{T}, 232, v{T}
        v_lshrrev_b32 v{T+1}, 5, v{L}
        v_lshl_add_u32 v{T}, v{T+1}, 3, v{T}
        v_add_u32 v{vSW}, s{sTMP}, v{T}
        v_bfe_u32 v{T}, v{L}, 2, 3
        v_lshlrev_b32 v{T}, 2, v{T}
        v_lshl_add_u32 v{T}, v{T+1}, 1, v{T}
        v_mul_u32_u24 v{T}, 232, v{T}
        v_and_b32 v{T+1}, 3, v{L}
        v_lshl_add_u32 v{T}, v{T+1}, 3, v{T}
        v_add_u32 v{T}, s{sTMP}, v{T}
        s_and_b32 s{sTMP}, s{sB}, 1
        s_lshl_b32 s{sTMP}, s{sTMP}, 6
        v_add_u32 v{vSA}, s{sTMP}, v{T}
        s_lshr_b32 s{sTMP}, s{sB}, 1
        s_lshl_b32 s{sTMP}, s{sTMP}, 5
        s_add_u32 s{sTMP}, s{sTMP}, 128
        v_add_u32 v{vSB}, s{sTMP}, v{T}
        ''')

def phi_load(c):
    for tp in range(2):
        for e in range(8):
            d = 16 * tp + 8 * (e >> 2) + (e & 3)
            c(f'ds_read_u16 v{(vT+6 if e & 1 else vPHI)+4*tp+(e>>1)}, v47 offset:{d*56}')
    c.p(GAP(2))
    for k in range(8): c(f'v_lshl_or_b32 v{vPHI+k}, v{vT+6+k}, 16, v{vPHI+k}')
    for k in (6, 7): c(f'v_cndmask_b32 v{vPHI+k}, v{vPHI+k}, 0, s[{sHI}:{sHI+1}]')

def clear_prep(c, typ):
    if typ == 'F': return
    for k in range(4): c(f'v_mov_b32 v{48+k}, -1')
    kf_addr(c, vCF, 34)

def clears(typ):
    M = 48
    if typ == 'F': return []
    if typ == 'F':
        return [Stream()(f'buffer_store_dwordx4 {vr(M,4)}, v{vL16}, {srd(SWS)}, s{sH[k]} offen offset:{off} {ST}', tag='h0') for k in (1, 2) for off in (0, 1024)]
    def st(s, off): return Stream()(f'buffer_store_dwordx4 {vr(M,4)}, v{vL16}, {srd(SWS)}, s{s} offen offset:{off} {ST}', tag='clr')
    g = [Stream()(f'buffer_store_dword v{M}, v{vCF}, {srd(SWS)}, s{sKFW} offen {ST}', tag='clr'), st(sKPW, 0), st(sKPW, 1024)]
    g[0](f'''
    s_lshr_b32 s{sD}, s2, 6
    s_lshl_b32 s{sD}, s{sD}, 5
    s_and_b32 s{sMT}, s2, 31
    s_add_u32 s{sD}, s{sD}, s{sMT}
    s_lshr_b32 s{sD}, s{sD}, 1
    s_lshl_b32 s{sD}, s{sD}, 7
    s_add_u32 s{sD}, s{sD}, {CNT}
    v_lshlrev_b32 v{vCF}, 21, v0
    v_lshlrev_b32 v{vCF+1}, 25, v0
    v_or_b32 v{vCF}, v{vCF}, v{vCF+1}
    v_lshrrev_b32 v{vCF}, 1, v{vCF}
    v_mov_b32 v{vCF+1}, 0
    ''')
    g[0](f'buffer_store_dword v{vCF+1}, v{vCF}, {srd(SWS)}, s{sD} offen {ST}', tag='clr')
    g[-1](f'''
    s_and_b32 s{sD}, s2, 3
    s_lshl_b32 s{sD}, s{sD}, 6
    v_lshlrev_b32 v{vCF}, 20, v0
    v_add_u32 v{vCF}, s{sD}, v{vCF}
    v_mov_b32 v{vCF+1}, 1
    ''')
    return g

def flag_setup(c):
    c(f'''
    s_lshl_b32 s{sD}, s{sI}, 9
    s_add_u32 s{sD}, s{sD}, {CNT}
    v_mov_b32 v{vCF}, s{sD}
    v_mov_b32 v{vCF+1}, {hx(OOB)}
    v_cmp_eq_u32 vcc, 0, v0
    v_cndmask_b32 v{vCF}, v{vCF+1}, v{vCF}, vcc
    v_cndmask_b32 v{vRQ}, 0, 1, vcc
    ''')
def arrive(c, s): c(f'buffer_atomic_add v{vRQ}, v{vCF}, {srd(SWS)}, 0 offen offset:{128*s} sc1')
def poll(c, s): c(f'buffer_load_dword v{vCF+1}, v{vCF}, {srd(SWS)}, 0 offen offset:{128*s} sc1')
def poll_check(c, s, typ):
    n = f'P{s}{typ}'; sh = 4 if s == 1 else 3
    c(f'v_lshrrev_b32 v{vCF+1}, {sh}, v{vCF+1}\nv_cmp_gt_u32 vcc, v{vRQ}, v{vCF+1}\ns_cbranch_vccnz R_{n}\nB_{n}:')
    RETRY.append(f'''R_{n}:
    s_mov_b32 s{sTMP2}, 0x8000
L_{n}:
    s_sleep {env('PSLEEP', 6)}
    buffer_load_dword v{vCF+1}, v{vCF}, {srd(SWS)}, 0 offen offset:{128*s} sc1
    s_waitcnt vmcnt(0)
    v_lshrrev_b32 v{vCF+1}, {sh}, v{vCF+1}
    v_cmp_gt_u32 vcc, v{vRQ}, v{vCF+1}
    s_cbranch_vccz B_{n}
    s_sub_u32 s{sTMP2}, s{sTMP2}, 1
    s_cmp_lg_u32 s{sTMP2}, 0
    s_cbranch_scc1 L_{n}
    s_branch B_{n}''')

def share_pf(c, quad, ptr, size, nl, sidx, tid, T, dst, tag=None):
    mk_srd(c, quad, ptr, None, size)
    c(f'''
    s_mul_i32 s{sD}, s{sidx}, {nl*128}
    v_add_u32 v{T+1}, {512-nl}, v{tid}
    v_lshlrev_b32 v{T}, 7, v{tid}
    v_lshrrev_b32 v{T+1}, 9, v{T+1}
    v_lshl_add_u32 v{T}, v{T+1}, 22, v{T}
    ''')
    c(f'buffer_load_dword v{dst}, v{T}, {srd(quad)}, s{sD} offen', tag)

def f_index(c, d):
    c(f's_lshr_b32 s{d}, s2, 6\ns_lshl_b32 s{d}, s{d}, 5\ns_and_b32 s{sD}, s2, 31\ns_add_u32 s{d}, s{d}, s{sD}')

def mall_prefetch(c, typ):
    if typ == 'H' or not env('PFW1', 1): return
    f_index(c, sTMP)
    c('v_xor_b32 v33, 128, v0')
    if env('PFQ2', 1): share_pf(c, SPHI, 6, 448 * 2688, 74, sTMP, 33, 34, 252)
    share_pf(c, SPHI, 14, 448 * 3584, 98, sTMP, 0, 34, 250)
    share_pf(c, SPHI, 16, 448 * 3584, 98, sTMP, 33, 34, 251)

def w2_prefetch(c):
    f_index(c, 93)
    c('v_xor_b32 v17, 128, v0')
    share_pf(c, 88, 18, 1792 * 896, 98, 93, 0, 15, 24)
    share_pf(c, 88, 10, 448 * 896, 25, 93, 17, 15, 25)

def l2_prefetch(c, rnd):
    if rnd == 0:
        mk_srd(c, 88, 18, None, 1792 * 896)
        c(f'''
        s_lshr_b32 s86, s2, 6
        s_lshl_b32 s86, s86, 2
        s_bfe_u32 s85, s2, 0x20003
        s_add_u32 s86, s86, s85
        s_mul_i32 s85, s86, {112*128}
        v_and_b32 v15, 7, v0
        v_lshrrev_b32 v16, 3, v0
        v_lshl_add_u32 v15, v15, 6, v16
        v_add_u32 v16, {512-112}, v15
        v_lshlrev_b32 v15, 7, v15
        v_lshrrev_b32 v16, 9, v16
        v_lshl_add_u32 v15, v16, 22, v15
        ''')
    elif rnd == 1:
        c(f'''
        s_lshr_b32 s85, s86, 1
        s_mul_i32 s85, s85, {192*896}
        s_and_b32 s87, s86, 1
        s_mul_i32 s87, s87, {32*896}
        s_add_u32 s85, s85, s87
        s_add_u32 s85, s85, {384*896}
        ''')
    elif rnd == 3:
        mk_srd(c, 88, 10, None, 448 * 896)
        c(f's_mul_i32 s85, s86, {196*128}')
    else: c(f's_add_u32 s85, s85, {(112 if rnd == 2 else 84)*128}')
    c(f'buffer_load_dword v{22 + (rnd & 1)}, v15, {srd(88)}, s85 offen')

def p2_setup(c, typ):
    T = vT + 4
    T2 = vD2
    mk_srd(c, SDBG, 22, None, 256)
    c(f'''
    s_and_b32 s{sCT}, s{sJ}, 3
    {f's_add_u32 s{sCT}, s{sCT}, 4' if typ == 'H' else ''}
    s_and_b32 s{sTMP}, s{sI}, 3
    s_mul_i32 s{sTMP}, s{sTMP}, {env('CTROT', 2)}
    s_add_u32 s{sTMP}, s{sTMP}, s{sCT}
    s_cmp_ge_u32 s{sTMP}, 7
    s_cselect_b32 s{sTMP2}, 7, 0
    s_sub_u32 s{sTMP}, s{sTMP}, s{sTMP2}
    s_lshl_b32 s{sTMP}, s{sTMP}, 7
    ''')
    mk_srd(c, SWD, 18, sTMP, 1792 * 896)
    mk_srd(c, SWO, 10, sTMP, 448 * 896)
    c(f'''
    s_lshr_b32 s{sTMP2}, s{sJ}, 2
    s_lshl_b32 s{sT}, s{sI}, 1
    s_add_u32 s{sT}, s{sT}, s{sTMP2}
    s_mul_i32 s{sTMP2}, s{sT}, {64*896}
    s_add_u32 s{sTMP}, s{sTMP}, s{sTMP2}
    ''')
    mk_srd(c, SXO, 4, sTMP, 2048 * 896)
    mk_srd(c, SOUT, 20, sTMP, 2048 * 896)
    c(f'''
    s_lshr_b32 s{sG2}, s{sW}, 1
    s_and_b32 s{sTMP}, s{sW}, 1
    s_lshl_b32 s{sT}, s{sT}, 1
    s_add_u32 s{sT}, s{sT}, s{sTMP}
    s_mul_i32 s{sT}, s{sT}, {144*1024}
    s_lshl_b32 s{sM2}, s{sB}, 12
    s_mul_i32 s{sTMP}, s{sTMP}, {32*896}
    v_bfe_u32 v{T}, v0, 3, 3
    v_and_b32 v{T+1}, 7, v0
    v_bfe_u32 v{T2}, v0, 4, 1
    v_lshlrev_b32 v{T2}, 2, v{T2}
    v_xor_b32 v{T+1}, v{T+1}, v{T2}
    v_mul_u32_u24 v{T}, 896, v{T}
    v_lshl_add_u32 v{T}, v{T+1}, 4, v{T}
    v_add_u32 v{vD2}, s{sTMP}, v{T}
    s_mul_i32 s{sHB[0]}, s{sG2}, 192
    s_add_u32 s{sHB[0]}, s{sHB[0]}, 256
    s_lshl_b32 s{sHB[1]}, s{sG2}, 6
    ''')
    for b in range(2):
        c(f's_mul_i32 s{sWB[b]}, s{sHB[b]}, 896\ns_lshl_b32 s{sHB[b]}, s{sHB[b]}, 6\ns_add_u32 s{sHB[b]}, s{sHB[b]}, s{sT}')
    c(f'''
    s_mul_i32 s{sWB[3]}, s{sG2}, {112*896}
    s_lshl_b32 s{sHB[3]}, s{sG2}, 13
    s_add_u32 s{sHB[3]}, s{sHB[3]}, s{sT}
    s_add_u32 s{sHB[3]}, s{sHB[3]}, {112*1024}
    ''')
    if typ == 'H':
        c(f's_cmp_eq_u32 s{sCT}, 7\ns_cselect_b32 s{SWD+2}, 0, s{SWD+2}')
    c(f's_add_u32 s{sV}, s{sCT}, s{sI}\ns_and_b32 s{sV}, s{sV}, 1')
    c.p(DONE('p2'))

def gelu_epi(G, U, n, out_regs, TB=vT):
    f = Stream()
    for i0 in range(0, n, 4):
        idx = list(range(i0, i0 + 4)); T = [TB + k for k in range(4)]
        for k, i in enumerate(idx): f(f'v_mul_f32 v{T[k]}, v{G+i}, v{G+i}')
        for k, i in enumerate(idx): f(f'v_fma_f32 v{T[k]}, v{T[k]}, v{vC1}, v{vK0}')
        for k, i in enumerate(idx): f(f'v_mul_f32 v{T[k]}, v{G+i}, v{T[k]}')
        for k, i in enumerate(idx):
            f(f'v_exp_f32 v{T[k]}, v{T[k]}')
            f(f'v_mul_f32 v{U+i}, v{G+i}, v{U+i}')
        for k, i in enumerate(idx): f(f'v_fma_f32 v{T[k]}, v{T[k]}, v{vSD2}, v{vSD2}')
        for k, i in enumerate(idx): f(f'v_rcp_f32 v{T[k]}, v{T[k]}')
        for k, i in enumerate(idx): f(f'v_mul_f32 v{U+i}, v{U+i}, v{T[k]}')
        for k in (0, 2): f(f'v_cvt_pk_bf16_f32 v{out_regs + (i0+k)//2}, v{U+i0+k}, v{U+i0+k+1}')
    return f

def gelu_du(acc, step, O=vT + 6):
    f = Stream()
    g = gelu_epi(acc, acc + 16, 16, O)
    half = len(g) // 2
    f += g[:half]
    f(f'buffer_store_dwordx4 {vr(O, 4)}, v{vL16}, {srd(SWS)}, s{sH[step]} offen {ST}', tag=f'h{step}')
    f += g[half:]
    f(f'buffer_store_dwordx4 {vr(O+4, 4)}, v{vL16}, {srd(SWS)}, s{sH[step]} offen offset:1024 {ST}', tag=f'h{step}')
    return f

def gelu_half(acc, step, O):
    f = gelu_epi(acc, acc + 8, 8, O, O + 4)
    f(f'buffer_store_dwordx4 {vr(O, 4)}, v{vL16}, {srd(SWS)}, s{sH[step]} offen {ST}', tag=f'h{step}')
    return f

def phi_front(f, A):
    B = vT + 6
    for k in range(8): f(f'v_cvt_pk_bf16_f32 v{B+k}, v{A+2*k}, v{A+2*k+1}')
    f(f'v_mfma_f32_32x32x16_bf16 {vr(A,16)}, {vr(vPHI,4)}, {vr(B,4)}, 0')
    f(f'v_mfma_f32_32x32x16_bf16 {vr(A,16)}, {vr(vPHI+4,4)}, {vr(B+4,4)}, {vr(A,16)}')

def phi_exp(f, A, EP):
    MX, MN, T0, T1 = vT, vT + 1, vT + 2, vT + 3
    f(f'v_max3_f32 v{MX}, v{A}, v{A+1}, v{A+2}')
    f(f'v_max3_f32 v{MN}, -v{A}, -v{A+1}, -v{A+2}')
    f(f'v_max3_f32 v{T0}, v{A+3}, v{A+4}, v{A+5}')
    f(f'v_max3_f32 v{T1}, -v{A+3}, -v{A+4}, -v{A+5}')
    for k in (6, 10):
        f(f'v_max3_f32 v{MX}, v{MX}, v{A+k}, v{A+k+1}')
        f(f'v_max3_f32 v{MN}, v{MN}, -v{A+k}, -v{A+k+1}')
        f(f'v_max3_f32 v{T0}, v{T0}, v{A+k+2}, v{A+k+3}')
        f(f'v_max3_f32 v{T1}, v{T1}, -v{A+k+2}, -v{A+k+3}')
    f(f'v_max_f32 v{MX}, v{MX}, v{T0}')
    f(f'v_max_f32 v{MN}, v{MN}, v{T1}')
    f(f'v_permlane32_swap_b32 v{MX}, v{MN}')
    f(f'v_max_f32 v{MX}, v{MX}, v{MN}')
    f(f'v_mul_f32 v{MX}, v{vRL}, v{MX}')
    f(f'v_mov_b32 v{MN}, v{MX}')
    f(f'v_permlane32_swap_b32 v{MX}, v{MN}')
    for i0 in range(0, 14, 2):
        for i in (i0, i0 + 1):
            f(f'v_fma_f32 v{EP+i}, v{A+i}, v{vRL}, -v{MX}')
            f(f'v_fma_f32 v{A+i}, -v{A+i}, v{vRL}, -v{MN}')
        for i in (i0, i0 + 1):
            f(f'v_exp_f32 v{EP+i}, v{EP+i}')
            f(f'v_exp_f32 v{A+i}, v{A+i}')

def k_epi(f, between):
    K = ACC[0]; EP = ACC[0] + 16
    f.p(GAP(2))
    phi_front(f, K)
    between(f)
    phi_exp(f, K, EP)
    S = [vT, vT + 1, vT + 2, vT + 3]
    f(f'v_add_f32 v{S[0]}, v{EP}, v{EP+1}\nv_add_f32 v{S[1]}, v{K}, v{K+1}')
    f(f'v_add_f32 v{S[2]}, v{EP+2}, v{EP+3}\nv_add_f32 v{S[3]}, v{K+2}, v{K+3}')
    for i in range(4, 14, 2):
        f(f'v_add_f32 v{S[0]}, v{S[0]}, v{EP+i}\nv_add_f32 v{S[1]}, v{S[1]}, v{K+i}')
        f(f'v_add_f32 v{S[2]}, v{S[2]}, v{EP+i+1}\nv_add_f32 v{S[3]}, v{S[3]}, v{K+i+1}')
    f(f'v_add_f32 v{S[0]}, v{S[0]}, v{S[2]}\nv_add_f32 v{S[1]}, v{S[1]}, v{S[3]}')
    f(f'v_permlane32_swap_b32 v{S[0]}, v{S[1]}')
    f(f'v_add_f32 v{S[0]}, v{S[0]}, v{S[1]}')
    f(f'v_mul_f32 v{S[0]}, v{S[0]}, v{vSD}')
    f(f'v_rcp_f32 v{S[0]}, v{S[0]}')
    f(f'v_mov_b32 v{S[1]}, v{S[0]}')
    f(f'v_permlane32_swap_b32 v{S[0]}, v{S[1]}')
    PB = vT + 6
    for sgn, src in ((0, EP), (1, K)):
        for j in range(4):
            n = 4 if j < 3 else 2
            for i in range(4 * j, 4 * j + n): f(f'v_mul_f32 v{src+i}, v{src+i}, v{S[sgn]}')
            o = PB + 8 * sgn + 2 * j
            f(f'v_cvt_pk_bf16_f32 v{o}, v{src+4*j}, v{src+4*j+1}')
            if j < 3: f(f'v_cvt_pk_bf16_f32 v{o+1}, v{src+4*j+2}, v{src+4*j+3}')
            else: f(f'v_mov_b32 v{o+1}, 0')
            f(f'ds_write_b64 v{vSW}, {vr(o, 2)} offset:{64*sgn + 16*j}', tag='scr')

vE = vT + 6
KPD = [22, 48]
KPLD = [f'buffer_load_dwordx4 {vr(KPD[k],4)}, v{18+k}, {srd(SWS)}, s{sKPR} offen sc1' for k in range(2)]

def vq_epi():
    f = Stream()
    V = ACC[1]; Q = ACC[1] + 16
    f.p(GAP(2))
    VB = vT + 14
    for k in range(8): f(f'v_cvt_pk_bf16_f32 v{VB+k}, v{V+2*k}, v{V+2*k+1}')
    f(f'v_lshrrev_b32 v{vT}, 16, v{vSD}')
    f(f'v_cndmask_b32 v{VB+6}, v{VB+6}, v{vT}, s[{sHI}:{sHI+1}]')
    f(f'v_cndmask_b32 v{VB+7}, v{VB+7}, 0, s[{sHI}:{sHI+1}]')
    for j in range(4): f(f'ds_write_b64 v{vSW}, {vr(VB+2*j, 2)} offset:{128 + 16*j}', tag='scr')
    f.p(DONE('scr'))
    phi_front(f, Q)
    f.p(SYNC('scrbar'))
    bufs = [V, vT + 6]
    D = [V + 12, vT + 18]
    def reads(kk):
        b = bufs[kk & 1]
        for rd in range(2):
            f(f'ds_read_b64_tr_b16 {vr(b+2*rd, 2)}, v{vSB} offset:{kk*7424 + rd*232}')
        for mt in range(2):
            for rd in range(2):
                f(f'ds_read_b64_tr_b16 {vr(b+4+4*mt+2*rd, 2)}, v{vSA} offset:{kk*7424 + rd*232 + mt*32}')
    reads(0); reads(1); f.p(GAP(1))
    for kk in range(4):
        b = bufs[kk & 1]
        for mt in range(2):
            f(f'v_mfma_f32_16x16x32_bf16 {vr(D[mt],4)}, {vr(b+4+4*mt,4)}, {vr(b,4)}, ' + ('0' if kk == 0 else vr(D[mt], 4)))
        if kk + 2 < 4: reads(kk + 2)
        f.p(GAP(1 if kk != 1 else 0))
    for mt in range(2):
        f(f'buffer_store_dwordx4 {vr(D[mt],4)}, v{vL16}, {srd(SWS)}, s{sKPW} offen offset:{1024*mt} {ST}')
    f.p(DONE('kp'))
    f(f'''
    v_bfe_u32 v18, v0, 3, 3
    v_and_b32 v20, 7, v0
    v_lshlrev_b32 v18, 11, v18
    v_lshl_add_u32 v18, v20, 4, v18
    v_add_u32 v19, 0x4000, v18
    ''')
    kf_addr(f, 21, 22)
    f(f'''
    s_lshr_b32 s{sROT}, s{sB}, 1
    s_and_b32 s{sROT}, s{sROT}, s{sI}
    s_and_b32 s{sROT}, s{sROT}, 1
    s_cmp_eq_u32 s{sROT}, 1
    s_cselect_b32 s{sROT}, 5, 99
    ''')
    f.p(DONE('kp2'))
    EP = V
    g = Stream(); phi_exp(g, Q, EP)
    for sgn, src in ((0, EP), (1, Q)):
        for k in range(8):
            if k < 7: g(f'v_cvt_pk_bf16_f32 v{vE+8*sgn+k}, v{src+2*k}, v{src+2*k+1}')
            else: g(f'v_mov_b32 v{vE+8*sgn+k}, 0')
    f += g
    return f

RETRY = []
def check(c, name, loads, regs, T, pre=''):
    def mx(s):
        r = list(regs)
        s(f'v_max3_u32 v{T}, v{r[0]}, v{r[1]}, v{r[2]}'); r = r[3:]
        two = len(r) > 6
        if two: s(f'v_max3_u32 v{T+1}, v{r[0]}, v{r[1]}, v{r[2]}'); r = r[3:]
        k = 0
        while len(r) >= 2:
            t = T + (k & 1 if two else 0); k += 1
            s(f'v_max3_u32 v{t}, v{t}, v{r[0]}, v{r[1]}'); r = r[2:]
        if two and r: s(f'v_max3_u32 v{T}, v{T}, v{T+1}, v{r[0]}')
        elif two: s(f'v_max_u32 v{T}, v{T}, v{T+1}')
        elif r: s(f'v_max_u32 v{T}, v{T}, v{r[0]}')
        s(f'v_cmp_eq_u32 vcc, -1, v{T}')
    mx(c)
    c(f's_cbranch_vccnz R_{name}\nB_{name}:')
    r = Stream()
    r(f'R_{name}:\ns_mov_b32 s{sTMP2}, 0x8000\nL_{name}:\ns_sleep 6\n{pre}')
    for l in loads: r(l)
    r('s_waitcnt vmcnt(0)')
    mx(r)
    r(f's_cbranch_vccz B_{name}\ns_sub_u32 s{sTMP2}, s{sTMP2}, 1\ns_cmp_lg_u32 s{sTMP2}, 0\ns_cbranch_scc1 L_{name}\ns_branch B_{name}')
    RETRY.append(finish(r))

def main_loop(typ, LOOK=4):
    cfg = CFG[typ]; bars = cfg['bars']; S = STEPS[typ]
    uses = []
    for step in range(3):
        for q in range(7):
            for t in range(4):
                for part in range(S[step]['parts']):
                    acc = ACC[step & 1] + 16 * part
                    uses.append((7 * step + q, t, part, step, acc, q == 0 and t == 0, 4 * q + t))
    N = len(uses)
    slot_of = dict(cfg['init']); slot2 = {}
    A = dict(nxt=len(slot_of), free=[], freed=0, half=None)
    xread = 0; xfreed = 0; xcredit = 0.0
    steps = [Stream(), Stream(), Stream()]
    state = {'c': steps[0], 'xhi': False, 'u': 0}
    dq = []; issued_at = {k: -99 for k in slot_of}
    def xr(k):
        c = state['c']
        blk = k >> 2
        if blk >= 4 and not state['xhi']:
            for j in range(4): c(f'v_add_u32 v{vXA+j}, 0x10000, v{vXA+j}')
            state['xhi'] = True
        c(f'ds_read_b128 {vr(XF+4*k,4)}, v{vXA+(k&3)} offset:{(blk & 3)*16384}', tag=f'X{blk}')
        if k == 27: c.p(MARK('xissued'))
    def pop_dma(c=None):
        c = state['c'] if c is None else c
        dq.sort(key=lambda e: e[0])
        slab, part = dq.pop(0)
        if isinstance(part, Stream):
            assert state['u'] >= N - 28 * S[2]['parts'] + S[2]['parts'] * (4 * int(slab - 21) + 4)
            c += part; return
        if slab >= 21:
            if slab == 21 and part == 0 and c is steps[1]: c.p(NEED('p2'))
            assert c is not steps[0]
            dma2(c, slab - 21, slot2[slab - 21], part)
        else:
            dma(c, typ, slab, slot_of[slab], part)
            if slab == 7: c.p(MARK('d6'))
        issued_at[slab] = state['u']
    def release(upto):
        while A['freed'] <= upto:
            f = A['freed']; sl = int(slot_of[f])
            held = 'holdslot' in cfg and cfg['holdslot'][0] == sl and f < 7
            if not any(int(v) == sl and m > f for m, v in slot_of.items()) and not held:
                A['free'].append(sl)
                if A['half'] is not None and int(A['half']) == sl: A['half'] = None
            A['freed'] += 1
    A['n2'] = 21
    def allocate(bar=99):
        while True:
            n = A['nxt']
            if n < 21 and (bar < cfg['w2bar'] or n < bar + cfg['ring']):
                if S[n // 7]['dparts'] == 1 and A['half'] is not None:
                    slot_of[n] = A['half']; A['half'] = None
                elif A['free']:
                    slot_of[n] = A['free'].pop(0)
                    if S[n // 7]['dparts'] == 1: A['half'] = slot_of[n] + 0.5
                else: break
                for part in range(S[n // 7]['dparts']): dq.append((n, part))
                A['nxt'] += 1
            elif A['n2'] < 30 and len(A['free']) >= 2:
                slot2[A['n2'] - 21] = (A['free'].pop(0), A['free'].pop(0))
                for k in range(4): dq.append((A['n2'], k))
                A['n2'] += 1
            else: break
        dq.sort(key=lambda e: e[0])
    def barrier(n):
        nonlocal xfreed
        c = state['c']
        k = bars.index(n); upto = bars[k + 1] if k + 1 < len(bars) else 21
        while dq and dq[0][0] < upto: pop_dma()
        assert A['nxt'] >= upto, (typ, n, A['nxt'], upto)
        if os.environ.get('VERB'): print(typ, 'barrier', n, 'u', state['u'], 'ages', [state['u'] - issued_at[m] for m in range(n, upto)], 'queue', len(dq), 'next', A['nxt'], A['n2'])
        tags = [f'W{m}' for m in range(n, upto)]
        nx = xread // 4
        for blk in range(xfreed, nx): tags.append(f'X{blk}')
        if n == 0: c.p(WAITLDS())
        if n == cfg.get('scrbar'): tags.append('scr')
        if n == cfg.get('stbar'): tags.append('st')
        if n == cfg['clrbar']: tags.append('clr')
        if n == cfg.get('abar'): tags.append('h0')
        stamp(c, f'b{n}a', 3 if PROF == 3 else 9)
        c.p(WAITTAG(*tags))
        if n == cfg['cfbar']:
            c(f'v_cmp_gt_u32 vcc, v{vCF}, v{vCF+1}\ns_cbranch_vccnz R_CF{typ}\nB_CF{typ}:')
        if n == cfg.get('habar'): poll_check(c, 0, typ)
        stamp(c, f'b{n}b', 3 if PROF == 3 else 9)
        c('s_barrier')
        stamp(c, f'b{n}', 1 if n == 0 else (2 if PROF < 4 else 9))
        for key in ('scrbar', 'stbar', 'cfbar', 'clrbar', 'phibar'):
            if n == cfg.get(key): c.p(MARK(key))
        if xfreed < 7 and nx == 7: c.p(MARK('xdone'))
        for blk in range(xfreed, nx):
            if blk not in cfg['reserved']: A['free'].append(blk)
        xfreed = nx
        release(n - 2)
        A['free'] += cfg['relbar'].get(n, [])
        if 'holdslot' in cfg and cfg['holdslot'][1] == n: A['free'].append(cfg['holdslot'][0])
        allocate(n)
        if n == cfg.get('habar'):
            for q in (0, 1): dq.extend([(21.5 + q, g) for g in hgroups(q)])
            dq.sort(key=lambda e: e[0])
    def newslab(u): return uses[u][1] == 0 and uses[u][2] == 0
    def reads(u):
        slab, t, part, step, acc, first, ks = uses[u]
        c = state['c']
        if newslab(u):
            c(f'v_add_u32 v{vC[0]}, {int(slot_of[slab]*16384)}, v{S[step]["pat"]}')
            if S[step]['parts'] == 2: c(f'v_xor_b32 v{vC[1]}, 32, v{vC[0]}')
        b = WF + 4 * (u % 6); ts = S[step]['ts']
        for rd in range(2):
            c(f'ds_read_b64_tr_b16 {vr(b+2*rd,2)}, v{vC[part]} offset:{part*8192 + t*ts + rd*ts//4}')
    def isbar(u): return u < N and newslab(u) and uses[u][0] in bars
    baru = [u for u in range(N) if isbar(u + LOOK)] + [N]
    prio_at = {}
    if env('PRIO', 1):
        prev = 0
        for e in baru:
            ln = e - prev
            if ln >= 8:
                for k in range(4): prio_at[prev + (k * ln) // 4] = 3 - k
            elif ln > 0: prio_at[prev] = 1; prio_at[prev + ln // 2] = 0
            prev = e
    barrier(0)
    for u in range(LOOK):
        reads(u)
        xr(xread); xread += 1
    lastd = -99
    def pace(u):
        if u < cfg['fast']: return 1
        nb = min(e for e in baru if e > u)
        return max(cfg['dgap'], min(cfg.get('maxgap', 4), (nb - 1 - lastd) // (len(dq) + 1)))
    extras = clears(typ); nex = len(extras)
    opregs = lambda u: [('v', r) for r in range(WF + 4 * (u % 6), WF + 4 * (u % 6) + 4)] + [('v', r) for r in range(XF + 4 * uses[u][6], XF + 4 * uses[u][6] + 4)]
    for u in range(N):
        slab, t, part, step, acc, first, ks = uses[u]
        state['c'] = steps[step]; state['u'] = u
        c = state['c']
        b = WF + 4 * (u % 6)
        bar_now = isbar(u + LOOK)
        if bar_now:
            c.p(WAITREG(opregs(u)))
            barrier(uses[u + LOOK][0])
        elif u + LOOK < N: reads(u + LOOK)
        xcredit += cfg['xrate']
        if not bar_now:
            while xcredit >= 1 and xread < 28:
                xr(xread); xread += 1; xcredit -= 1
        assert step > 0 or xread > ks
        if isbar(u + 1 + LOOK):
            n = uses[u + 1 + LOOK][0]
            if n == cfg.get('scrbar'): c.p(NEED('scr'))
            if n == cfg.get('stbar'): c.p(NEED('st'))
            if n == cfg['clrbar']: assert not extras; c.p(NEED('p2'))
            if n == cfg.get('abar'): assert not extras
            if n == cfg.get('abar') and c is steps[1]: c.p(NEED('hA'))
            c.p(NOFILL())
        if env('W2WAIT', 1) and u % 2 == 1 and u + 1 < N and xread == 28: c.p(WAITREG(opregs(u) + opregs(u + 1)))
        imf = len(c)
        c(f'v_mfma_f32_32x32x16_bf16 {vr(acc,16)}, {vr(b,4)}, {vr(XF+4*ks,4)}, ' + ('0' if first else vr(acc, 16)))
        if u in prio_at: c(f's_setprio {prio_at[u]}')
        if bar_now:
            reads(u + LOOK)
            if uses[u + LOOK][0] == cfg['clrbar']:
                c(f'buffer_atomic_add v{vCF+1}, v{vCF}, {srd(SDBG)}, 0 offen sc1')
            if uses[u + LOOK][0] == cfg['cfbar']: flag_setup(c)
            if uses[u + LOOK][0] == cfg.get('abar'): arrive(c, 0)
        elif not isbar(u + 1 + LOOK):
            if extras and u >= cfg['clr0'] + cfg['clrgap'] * (nex - len(extras)):
                c += extras.pop(0)
            elif dq and u - lastd >= pace(u):
                n0 = len(c); pop_dma(); lastd = u
                if env('M0EARLY', 1) and isinstance(c[n0], I) and c[n0].text.startswith('s_add_u32 m0') and isinstance(c[n0 + 1], P):
                    c.insert(imf, c.pop(n0))
        if typ == 'F' and u == env('PFW2U', 46): w2_prefetch(c)
        L2U = eval(env('L2U', '[]'))
        if typ == 'F' and u in L2U: l2_prefetch(c, L2U.index(u))
        if u == cfg['pollA']: poll(c, 0)
        if u == cfg['pollu']:
            c(f'''
            v_lshlrev_b32 v{vCF}, 6, v0
            buffer_load_dword v{vCF+1}, v{vCF}, {srd(SDBG)}, 0 offen sc1
            v_cmp_gt_u32 vcc, 4, v0
            v_cndmask_b32 v{vCF}, 0, 32, vcc
            ''')
    RETRY.append(f'''R_CF{typ}:
    s_mov_b32 s{sTMP2}, 0x8000
L_CF{typ}:
    s_sleep 40
    v_lshlrev_b32 v{vCF+1}, 6, v0
    buffer_load_dword v{vCF+1}, v{vCF+1}, {srd(SDBG)}, 0 offen sc1
    s_waitcnt vmcnt(0)
    v_cmp_gt_u32 vcc, v{vCF}, v{vCF+1}
    s_cbranch_vccz B_CF{typ}
    s_sub_u32 s{sTMP2}, s{sTMP2}, 1
    s_cmp_lg_u32 s{sTMP2}, 0
    s_cbranch_scc1 L_CF{typ}
    s_branch B_CF{typ}''')
    state['u'] = N
    return steps, dict(dq=dq, pop=pop_dma, release=release, allocate=allocate, slot2=slot2, A=A)

def sprinkle(base, groups):
    out = Stream(); n = len(base); k = 0
    for i, ins in enumerate(base):
        while k < len(groups) and (k + 0.3) * n / max(len(groups), 1) <= i:
            out += groups[k]; k += 1
        out.append(ins)
    for g in groups[k:]: out += g
    return out

vP2 = 7; vRW = [15, 16, 17, 18]; vRR = [19, 20]; vXO = 21; XR = 22; TC = 26
def p2_lanes():
    T = TC
    su = Stream()
    su(f'''
    v_bfe_u32 v{T}, v0, 5, 1
    v_bfe_u32 v{T+1}, v0, 2, 2
    v_lshl_add_u32 v{T+1}, v{T}, 2, v{T+1}
    v_and_b32 v{T+2}, 3, v0
    v_lshlrev_b32 v{T+2}, 3, v{T+2}
    v_bfe_u32 v{T+3}, v0, 4, 1
    v_lshl_add_u32 v{T+2}, v{T+3}, 5, v{T+2}
    v_bfe_u32 v{T+3}, v0, 3, 1
    v_lshl_add_u32 v{T+2}, v{T+3}, 6, v{T+2}
    v_lshl_add_u32 v{T+1}, v{T+1}, 7, v{T+2}
    s_and_b32 s{sTMP}, s{sG2}, 1
    s_lshl_b32 s{sTMP}, s{sTMP}, 13
    v_add_u32 v{vP2}, s{sTMP}, v{T+1}
    v_and_b32 v{T+1}, 7, v0
    v_xor_b32 v{T+2}, v{T}, v{T+1}
    v_and_b32 v{T+3}, 31, v0
    v_bfe_u32 v{T}, v0, 6, 1
    v_lshl_add_u32 v{T+3}, v{T}, 5, v{T+3}
    v_lshlrev_b32 v{T+3}, 8, v{T+3}
    v_lshl_add_u32 v{vRR[1]}, v{T+2}, 4, v{T+3}
    v_lshrrev_b32 v{T}, 3, v0
    v_and_b32 v{T+2}, 7, v{T}
    v_lshlrev_b32 v{T+3}, 1, v{T+1}
    v_xor_b32 v{T+3}, v{T+3}, v{T+2}
    v_lshlrev_b32 v{T+3}, 4, v{T+3}
    v_lshl_add_u32 v{vRR[0]}, v{T}, 8, v{T+3}
    v_mul_u32_u24 v{vXO}, 896, v{T}
    v_lshl_add_u32 v{vXO}, v{T+1}, 4, v{vXO}
    ''')
    return su

def phase2(c, typ, M, tail):
    HF = XF; ACF = ACC[1]; ACS = ACC[0]
    slot2 = M['slot2']; dq = M['dq']
    def dgroups(upto):
        gs = []
        while dq and dq[0][0] - 21 <= upto:
            g = Stream(); M['pop'](g); gs.append(g)
        return gs
    c('s_setprio 0')
    stamp(c, 'main')
    def reduce(c, name):
        a, b = KPD
        check(c, name, KPLD, list(range(a, a + 4)) + list(range(b, b + 4)), TC)
        for k in range(4): c(f'v_add_f32 v{a+k}, v{a+k}, v{b+k}')
        for k in range(4): c(f'v_add_f32_dpp v{a+k}, v{a+k}, v{a+k} row_ror:8 row_mask:0xf bank_mask:0xf')
        c(f'''
        v_permlane16_swap_b32 v{a}, v{a+1}
        v_permlane16_swap_b32 v{a+2}, v{a+3}
        v_add_f32 v{a}, v{a}, v{a+1}
        v_add_f32 v{a+2}, v{a+2}, v{a+3}
        v_permlane32_swap_b32 v{a}, v{a+2}
        v_add_f32 v{a}, v{a}, v{a+2}
        v_cmp_eq_u32 vcc, s{sROT}, v20
        v_cndmask_b32 v{a}, v{a}, 1.0, vcc
        v_mov_b32 v{a+1}, v{a}
        v_permlane16_swap_b32 v{a}, v{a+1}
        v_cvt_pk_bf16_f32 v{a}, v{a}, v{a+1}
        buffer_store_dword v{a}, v21, {srd(SWS)}, s{sKFW} offen {ST}
        ''')
    KFR = hreg(6)
    KFLD = [f'buffer_load_dwordx4 {vr(KFR+4*k,4)}, v{vL16}, {srd(SWS)}, s{sKFR} offen offset:{1024*k} sc1' for k in range(4)]
    def oblock(s, name):
        AP = ACS; AM = ACS + 16; T = TC; O = KFR
        check(s, name, KFLD, list(range(KFR, KFR + 16)), TC)
        s(f'''
        v_mfma_f32_32x32x16_bf16 {vr(AP,16)}, {vr(KFR,4)}, {vr(vE,4)}, 0
        v_mfma_f32_32x32x16_bf16 {vr(AM,16)}, {vr(KFR+8,4)}, {vr(vE+8,4)}, 0
        v_mfma_f32_32x32x16_bf16 {vr(AP,16)}, {vr(KFR+4,4)}, {vr(vE+4,4)}, {vr(AP,16)}
        v_mfma_f32_32x32x16_bf16 {vr(AM,16)}, {vr(KFR+12,4)}, {vr(vE+12,4)}, {vr(AM,16)}
        v_rcp_f32 v{T}, v{AP+13}
        v_rcp_f32 v{T+1}, v{AM+13}
        v_mov_b32 v{T+2}, {hx(f2u(1e-6))}
        v_fmac_f32 v{T+2}, v{T}, v{AP+12}
        v_fmac_f32 v{T+2}, v{T+1}, v{AM+12}
        v_rcp_f32 v{T+2}, v{T+2}
        v_mul_f32 v{T}, v{T}, v{T+2}
        v_mul_f32 v{T+1}, v{T+1}, v{T+2}
        v_mov_b32 v{T+3}, v{T}
        v_mov_b32 v{T+4}, v{T+1}
        v_permlane32_swap_b32 v{T+3}, v{T}
        v_permlane32_swap_b32 v{T+4}, v{T+1}
        ''')
        for i in range(16): s(f'v_mul_f32 v{AP+i}, v{T}, v{AP+i}')
        for i in range(16): s(f'v_fmac_f32 v{AP+i}, v{T+1}, v{AM+i}')
        for k in range(8): s(f'v_cvt_pk_bf16_f32 v{vE+k}, v{AP+2*k}, v{AP+2*k+1}')
        s(f'''
        v_cndmask_b32 v{vE+6}, v{vE+6}, 0, s[{sHI}:{sHI+1}]
        v_cndmask_b32 v{vE+7}, v{vE+7}, 0, s[{sHI}:{sHI+1}]
        ''')
        s(f'''
        buffer_store_dwordx4 {vr(vE,4)}, v{vL16}, {srd(SWS)}, s{sO} offen {ST}
        buffer_store_dwordx4 {vr(vE+4,4)}, v{vL16}, {srd(SWS)}, s{sO} offen offset:1024 {ST}
        ''', tag='o')
    def notile():
        c(f's_cmp_eq_u32 s{sCT}, 7\ns_cbranch_scc1 KM_NOTILE')
        s = Stream(); s('KM_NOTILE:\ns_nop 7\ns_nop 7'); s += tail
        for l in KPLD: s(l)
        reduce(s, 'KP2')
        s('s_waitcnt vmcnt(0)\ns_barrier'); arrive(s, 1)
        s('s_sleep 8')
        for l in KFLD: s(l)
        oblock(s, 'KF2')
        s('s_waitcnt vmcnt(0)\ns_barrier'); arrive(s, 3)
        s('s_endpgm')
        RETRY.append(finish(s))
    covered = set()
    uses = [(r, cb) for r in range(32) for cb in range(2)] + [(r, cb) for cb in range(2) for r in range(32, 36)]
    def reads(u):
        r, cb = uses[u]; q = r // 4
        if u % 8 == 0:
            c(f's_mul_i32 s{sTMP}, s{sG}, {(slot2[q][1]-slot2[q][0])*16384}\ns_add_u32 s{sTMP}, s{sTMP}, {slot2[q][0]*16384}')
            c(f'v_add_u32 v{vC[0]}, s{sTMP}, v{vP2}\nv_xor_b32 v{vC[1]}, 64, v{vC[0]}')
        b = WF + 4 * (u % 6)
        for rd in range(2):
            row = 16 * (r % 4) + 8 * rd if r < 28 else 28 * ((r % 4) >> 1) + 16 * (r & 1) + 8 * rd
            c(f'ds_read_b64_tr_b16 {vr(b+2*rd,2)}, v{vC[cb]} offset:{row*128}')
    def part_addr(slots):
        c(f'''
        s_cmp_lt_u32 s{sW}, 4
        s_cselect_b32 s{sTMP}, {slots[0]}, {slots[2]}
        s_cselect_b32 s{sTMP2}, {slots[1]}, {slots[3]}
        s_bitcmp1_b32 s{sW}, 1
        s_cselect_b32 s{sTMP}, s{sTMP2}, s{sTMP}
        s_lshl_b32 s{sTMP}, s{sTMP}, 14
        v_add_u32 v{vRW[0]}, s{sTMP}, v{vRR[1]}
        ''')
        for j in range(1, 4): c(f'v_xor_b32 v{vRW[j]}, {32*j}, v{vRW[0]}')
    def pwrite(acc, c=c, cbs=(0, 1)):
        for cb in cbs:
            for j in range(4):
                c(f'ds_write_b128 v{vRW[j]}, {vr(acc+16*cb+4*j,4)} offset:{cb*128}', tag='pw')
    def pread(dst, slots):
        for p in range(4):
            c(f'v_add_u32 v{TC}, {slots[p]*16384}, v{vRR[0]}\nv_xor_b32 v{TC+1}, 16, v{TC}')
            for k in range(2): c(f'ds_read_b128 {vr(dst+8*p+4*k,4)}, v{TC+k}')
    def psum(dst):
        for i in range(8): c(f'v_add_f32 v{dst+i}, v{dst+i}, v{dst+8+i}')
        for i in range(8): c(f'v_add_f32 v{dst+16+i}, v{dst+16+i}, v{dst+24+i}')
        for i in range(8): c(f'v_add_f32 v{dst+i}, v{dst+i}, v{dst+16+i}')
    FSR = hreg(2); SS = hreg(4)
    st = dict(nread=0, done=-1, freed=-1)
    def ahead(u):
        while st['nread'] < 72 and st['nread'] <= u + 4 and st['nread'] // 8 in covered: reads(st['nread']); st['nread'] += 1
    def compute(q):
        for u in range(8 * q, 8 * q + 8):
            r, cb = uses[u]
            ahead(u); assert st['nread'] > u
            acc = (ACF if r < 28 else ACS) + 16 * cb
            first = r == 0 or r == 28
            c(f'v_mfma_f32_32x32x16_bf16 {vr(acc,16)}, {vr(WF+4*(u%6),4)}, {vr(hreg(q)+4*(r%4),4)}, ' + ('0' if first else vr(acc, 16)))
        st['done'] = q
    def units(lst):
        g = []
        for o in lst:
            k, a = o[0], o[1:]
            if k == 'W': g += dgroups(int(a)); assert int(a) in slot2
            elif k == 'h':
                assert int(a) < 7 or st['done'] >= int(a) - 7
                g += hgroups(int(a))
            elif o == 'K': g += [Stream()(l) for l in KFLD]
            elif o == 'k': g += [Stream()(l) for l in KPLD]
            elif k == 'P': t = Stream(); poll(t, int(a)); g.append(t)
            elif k == 'x': g.append(Stream()(f'buffer_load_dwordx4 {vr(XR,4)}, v{vXO}, {srd(SXO)}, 0 offen'))
            else: raise ValueError(o)
        return g
    def silu(f):
        for i in range(8): f(f'v_add_f32 v{FSR+i}, v{FSR+i}, v{FSR+8+i}')
        for i in range(8): f(f'v_add_f32 v{FSR+16+i}, v{FSR+16+i}, v{FSR+24+i}')
        for i in range(8): f(f'v_add_f32 v{FSR+i}, v{FSR+i}, v{FSR+16+i}')
        for i in range(8): f(f'v_mul_f32 v{FSR+8+i}, {hx(f2u(-LOG2E))}, v{FSR+i}')
        for i in range(8): f(f'v_exp_f32 v{FSR+8+i}, v{FSR+8+i}')
        for i in range(8): f(f'v_add_f32 v{FSR+8+i}, 1.0, v{FSR+8+i}')
        for i in range(8): f(f'v_rcp_f32 v{FSR+8+i}, v{FSR+8+i}')
        for i in range(8): f(f'v_mul_f32 v{FSR+i}, v{FSR+i}, v{FSR+8+i}')
        for kk in range(4):
            f(f'v_lshlrev_b32 v{FSR+8+2*kk}, 16, v{XR+kk}\nv_and_b32 v{FSR+9+2*kk}, 0xffff0000, v{XR+kk}')
    PS = []
    SCRIPT = {
        'F': 'Th1 B0,1 A1 G C0:W3 C1:W4 Th2 B A2 P1 W5 W6 K1 B2,3,4 h2 h3 C2:h4,P2 B C3:W7 K2 B5,6 C4:P3,h5,h6 K3 B C5:h7,W8,x B7 C6:h8 E7 B8 E8',
        'H': 'B N G:P0,W1,k K0 B h0 Z U h1 Th2 B0,1 A1 C0:W2,K C1:W3 O:W4 B P1 W5 To B A3 W6 K1 B2,3,4 h2 h3 C2:h4,P2 B C3:W7 K2 B5,6 C4:P3,h5,h6 K3 B C5:h7,W8,x B7 C6:h8 E7 B8 E8',
    }
    nb = 0
    for op in os.environ.get('SCRIPT' + typ, SCRIPT[typ]).split():
        op, _, un = op.partition(':')
        k, a = op[0], op[1:]
        gs = units(un.split(',')) if un else None
        n0 = len(c)
        if k == 'C': compute(int(a))
        elif k in 'WhPxk' or op == 'K':
            for g in units([op]): c += g
        elif k == 'B':
            cov = [int(x) for x in a.split(',')] if a else []
            stamp(c, f'p{nb}a', 4)
            c.p(WAITTAG('pw', *[f'V{m}' for m in cov]))
            c('s_barrier'); stamp(c, f'p{nb}', 2 if PROF != 3 else 9); nb += 1
            covered |= set(cov)
            if nb == 1:
                M['release'](20); M['A']['free'] += [x for x in CFG[typ]['reserved'] if typ == 'H']
            while st['freed'] < st['done']:
                st['freed'] += 1; M['A']['free'] += list(slot2[st['freed']])
            M['allocate']()
            if nb == 1 and os.environ.get('VERB'): print(typ, 'phase2 slots', slot2, 'queue', [e[0] for e in dq])
            ahead(8 * (st['done'] + 1) - 1)
        elif k == 'K': poll_check(c, int(a), typ)
        elif k == 'T': c.p(WAITTAG(a))
        elif k == 'Y': check(c, f'H{a}{typ}', hloads(int(a)), list(range(hreg(int(a)), hreg(int(a)) + 16)), TC, pre=hpre(int(a)))
        elif k == 'N': notile()
        elif k == 'G': c += tail
        elif k == 'Z': reduce(c, 'KP')
        elif k == 'U': c += p2_lanes()
        elif k == 'D':
            compute(0); compute(1)
            m = Stream(c[n0:]); del c[n0:]
            c += interleave(m, tail, env('BD', 8.0))
        elif k == 'A': arrive(c, int(a))
        elif k == 'O':
            oblock(c, 'KF')
            n0 = next(i for i in range(n0, len(c)) if isinstance(c[i], I) and c[i].kind == 'label') + 1
        elif k == 'X':
            assert st['freed'] >= 5
            PS = list(slot2[4]) + list(slot2[5])
            part_addr(PS); n0 = len(c); pwrite(ACF)
        elif k == 'S':
            pread(FSR, PS)
            n0 = len(c); compute(7); compute(8)
            f = Stream(); silu(f)
            m = Stream(c[n0:]); del c[n0:]
            c += interleave(m, f, 6.5)
        elif op == 'E7':
            assert st['freed'] >= 5
            PS = list(slot2[4]) + list(slot2[5])
            part_addr(PS)
            n0 = len(c); compute(7)
            f = Stream([GAP(1)]); pwrite(ACF, f)
            m = Stream(c[n0:]); del c[n0:]
            c += interleave(m, f, 0.75)
        elif op == 'E8':
            assert st['freed'] >= 7
            pread(FSR, PS)
            PS = list(slot2[6]) + list(slot2[7])
            part_addr(PS)
            n0 = len(c); compute(8)
            m = Stream(c[n0:]); del c[n0:]
            k5 = [i for i, x in enumerate(m) if isinstance(x, I) and x.kind == 'mfma'][5]
            m.insert(k5, MARK('cb0'))
            g = Stream(); silu(g)
            w = Stream(); pwrite(ACS, w, (0,))
            cutn = int(len(g) * 0.5)
            rest = Stream()
            c += interleave(m, Stream([GAP(1)] + g[:cutn] + [SYNC('cb0')] + w + g[cutn:]), 8, rest)
            nw = max([i + 1 for i, x in enumerate(rest) if x.kind == 'ds'], default=0)
            c += rest[:nw + 10]
            pwrite(ACS, c, (1,))
            c += rest[nw + 10:]
            st['new'] = True
        else: raise ValueError(op)
        if gs:
            m = Stream(c[n0:]); del c[n0:]
            if k == 'C':
                per = len(gs) / 8.0; cnt = 0; done = 0
                for ins in m:
                    c.append(ins)
                    if isinstance(ins, I) and ins.kind == 'mfma':
                        cnt += 1
                        while done < len(gs) and done + 0.5 <= cnt * per + (0.5 if per < 1 else 0): c += gs[done]; done += 1
                for g in gs[done:]: c += g
            else: c += sprinkle(m, gs)
        if k in 'COGZDE': stamp(c, op, 4 if k in 'CE' else 1)
    stamp(c, 'mm')
    if 'new' not in st:
        c('s_barrier')
        pwrite(ACS)
    c.p(WAITTAG('pw')); c('s_barrier')
    pread(SS, PS)
    psum(SS)
    for i in range(8): c(f'v_fmac_f32 v{FSR+8+i}, v{SS+i}, v{FSR+i}')
    for k in range(4): c(f'v_cvt_pk_bf16_f32 v{XR+k}, v{FSR+8+2*k}, v{FSR+9+2*k}')
    c(f'buffer_store_dwordx4 {vr(XR,4)}, v{vXO}, {srd(SOUT)}, 0 offen ' + env('OUTF', 'sc0 sc1'))
    stamp(c, 'end')

def strip(c): return Stream([x for x in c if not (isinstance(x, P) and x.kind == 'slotend')])

def gen():
    text = []
    top = Stream()
    top(f'''
    s_cmp_ge_u32 s2, 256
    s_cbranch_scc1 KM_EXIT
    s_load_dwordx8 s[4:11], s[0:1], 0
    s_load_dwordx8 s[12:19], s[0:1], 32
    s_load_dwordx4 s[20:23], s[0:1], 64
    s_load_dwordx2 s[24:25], s[0:1], 80
    {('s_memrealtime s[66:67]' if env('RT', 0) else 's_memtime s[66:67]') if PROF else ''}
    {'s_memrealtime s[92:93]' if PROF else ''}
    ''')
    top_common(top)
    top('s_bitcmp1_b32 s2, 5\ns_cbranch_scc1 KM_H')
    names = {}
    fs0 = (FS['n'], list(FS['names']))
    for typ in 'FH':
        FS['n'] = fs0[0]; FS['names'] = list(fs0[1])
        c = Stream(top)
        prologue(c, typ)
        steps, M = main_loop(typ)
        bud = CFG[typ]['bud']
        f0 = Stream()
        if typ == 'F':
            f0.p(SYNC('d6')); p2_setup(f0, typ)
            f0.p(SYNC('xdone')); stat_put(f0); f0.p(DONE('st'))
            f1 = Stream(); f1.p(DONE('st')); f1.p(DONE('p2')); stat_get(f1, typ); f1 += gelu_du(ACC[0], 0); f1.p(DONE('hA'))
            c += interleave(steps[0], f0, bud[0])
            c += interleave(steps[1], f1, bud[1])
            c += interleave(steps[2], Stream([GAP(2)]) + gelu_du(ACC[1], 1) + p2_lanes(), bud[2])
            tail = gelu_du(ACC[0], 2)
        else:
            f0.p(SYNC('phibar')); phi_load(f0); f0.p(SYNC('d6')); p2_setup(f0, typ); f0.p(SYNC('xissued')); stat_get(f0, typ)
            f1 = Stream(); f1.p(DONE('p2')); k_epi(f1, lambda f: f.p(GAP(2)))
            c += interleave(steps[0], f0, bud[0])
            c += interleave(steps[1], f1, bud[1])
            rest = Stream()
            c += interleave(steps[2] + [NEED('kp2')], vq_epi(), bud[2], rest)
            tail = Stream(gelu_half(ACC[0], 2, WF) + rest)
            if os.environ.get('VERB'): print('H leftover', len(rest))
        phase2(c, typ, M, tail)
        prof_out(c, typ)
        c('s_endpgm')
        full = finish(strip(c)).split('\n')
        idx = next(k for k, l in enumerate(full) if 's_cbranch_scc1 KM_H' in l)
        if typ == 'F': text += full
        else: text += ['KM_H:'] + full[idx + 1:]
        text += RETRY; RETRY.clear()
        names[typ] = list(FS['names'])
    text += ['KM_EXIT:', '    s_endpgm']
    return '\n'.join(text).replace('KM_SETUP:', setup_block('H') + '\n' + setup_block('F')), names

if __name__ == '__main__':
    import sys, json
    NAME = KN[:-7]
    hdr = open(f'cdna_kernels/{NAME}.s.ref').read().split('; Override launch')[0]
    body, names = gen()
    s = hdr + '; @launch grid=(256,1,1) block=(512,1,1) lds=163840\n'
    if PROF: s += '; STAMPS ' + json.dumps(names) + '\n'
    s += '.amdgcn_target "amdgcn-amd-amdhsa--gfx950"\n.text\n' + kernel(KN, body)
    out = sys.argv[1] if len(sys.argv) > 1 else f'cdna_kernels/{NAME}.s'
    open(out, 'w').write(s)
    print('wrote', out, len(s.split('\n')), 'lines')
```

```python
import sys, os; sys.path.insert(0, 'gen')
os.environ['RT'] = '1'; os.environ.setdefault('PROF', '1')
from asmlib import *
import km
body, names = km.gen()
def k3(typ, lane, red):
    tb = 32 if typ == 'H' else 0
    b = f'''
    s_cmp_ge_u32 s2, 1
    s_cbranch_scc1 K3_EXIT
    s_load_dwordx2 s[4:5], s[0:1], 80
    s_waitcnt lgkmcnt(0)
    s_mov_b32 s8, s4
    s_mov_b32 s9, s5
    s_mov_b32 s10, 0x1200000
    s_mov_b32 s11, 0x20000
    v_and_b32 v1, 31, v0
    v_min_u32 v1, {23 if typ == 'H' else 31}, v1
    v_lshrrev_b32 v2, 5, v0
    v_lshl_add_u32 v1, v2, 6, v1
    v_add_u32 v3, {tb}, v1
    v_lshlrev_b32 v1, 11, v1
    v_lshlrev_b32 v3, 11, v3
    v_add_u32 v1, {km.PRB}, v1
    v_add_u32 v3, {km.PRB}, v3
    s_mov_b32 s20, {128*2048}
    buffer_load_dword v4, v1, s[8:11], 0 offen offset:4
    buffer_load_dword v5, v1, s[8:11], s20 offen offset:4
    buffer_load_dword v6, v3, s[8:11], 0 offen offset:{lane*4}
    buffer_load_dword v7, v3, s[8:11], s20 offen offset:{lane*4}
    s_waitcnt vmcnt(0)
    v_min_u32 v4, v4, v5
    s_nop 1
    v_readfirstlane_b32 s12, v4
'''
    for l in range(1, 64): b += f'    v_readlane_b32 s13, v4, {l}\n    s_nop 3\n    s_min_u32 s12, s12, s13\n'
    b += '    v_subrev_u32 v6, s12, v6\n    v_subrev_u32 v7, s12, v7\n'
    op = {'max': ('v_max_u32', 's_max_u32'), 'min': ('v_min_u32', 's_min_u32'), 'avg': ('v_add_u32', 's_add_u32')}[red]
    b += f'    {op[0]} v6, v6, v7\n    s_nop 1\n    v_readfirstlane_b32 s15, v6\n'
    for l in range(1, 64): b += f'    v_readlane_b32 s13, v6, {l}\n    s_nop 3\n    {op[1]} s15, s15, s13\n'
    if red == 'avg': b += '    s_lshr_b32 s15, s15, 7\n'
    b += '''
    s_min_u32 s15, s15, 20000
    s_add_u32 s12, s12, s15
    s_add_u32 s12, s12, 6000
K3_L:
    s_memrealtime s[16:17]
    s_waitcnt lgkmcnt(0)
    s_sub_u32 s16, s16, s12
    s_cmp_lt_i32 s16, 0
    s_cbranch_scc1 K3_L
K3_EXIT:
    s_endpgm
'''
    return b
hdr = open(f'cdna_kernels/{km.KN[:-7]}.s.ref').read().split('; Override launch')[0]
for spec in sys.argv[1:]:
    name, typ, st, red = spec.split(',')
    lane = 1 if st == 'start' else names[typ].index(st) + 2
    s = hdr + f'; @launch kernel={km.KN} grid=(256,1,1) block=(512,1,1) lds=163840\n; @launch kernel=hh_k3_kernel grid=(1,1,1) block=(64,1,1) lds=0\n'
    s += '.amdgcn_target "amdgcn-amd-amdhsa--gfx950"\n.text\n' + kernel(km.KN, body) + kernel('hh_k3_kernel', k3(typ, lane, red), vgpr=16, sgpr=32)
    open(f'probe/{name}.s', 'w').write(s)
print(names)
```

```python
from asmlib import *
import struct, math, os

def f2u(x): return struct.unpack('<I', struct.pack('<f', x))[0]
def hx(x): return '0x%08x' % (x & 0xffffffff)
def env(k, d): return type(d)(os.environ.get(k, d))
LOG2E = 1.4426950408889634
GK0 = -2.0 * math.sqrt(2.0 / math.pi) * LOG2E
KN = 'recurrent_scan__linear_kernel_hedgehog__glu_gated_geglu__prompt_kernel'

HB = 0
KP = 0xA00000
KF = 0xC00000
CNT = 0xC10000
WS_END = 0xC12000
OOB = 0x7ff00000
PROF = env('PROF', 0); PRB = 0x1100000
if PROF: WS_END = 0x1200000
ST = 'sc0 sc1'

SX = 28; SW = [[32, 36], [40, 44], [48, 52]]; SWS = 56; SDBG = 60; SPHI = 64
sW, sB, sG, sI, sJ, sT, sROT, sM0 = 68, 69, 70, 71, 72, 73, 74, 75
sKA = 76; sXO = 76; sKB = 83
sH = [97, 98, 99]
sTMP = 26; sTMP2 = 27; sHI = 100
sO = 90; sKPW = 91; sKPR = 92; sKFW = 93; sKFR = 96
SWD = 32; SWO = 36; SXO = 28; SOUT = 64
sWB = [6, 7, 8, 9]; sHB = [14, 15, 16, 17]; sG2 = 22; sM2 = 23; sCT = 24; sMT = 25; sD = 3
def srd(n): return f's[{n}:{n+3}]'

vL16 = 1; vDA = [2, 3]; vDB = [4, 5]; vPDU = 6; vPX = 7; vC = [8, 9]; vK0 = 10; vXA = 11
vC1 = 11; vSD2 = 12; vRL = 13; vSD = 14
vSW = 15; vSA = 16; vSB = 17; vPHI = 18; vT = 26; WF = 56; ACC = [80, 112]; XF = 144
vLS = 44
vCF = 52
vD2 = 54; vPR = 55; vRQ = 5
SCR = 49152
MISC = 155648
STAT = {'F': 110592, 'H': MISC + 4096}
def vr(a, n): return f'v[{a}:{a+n-1}]'

def mk_srd(c, d, plo, off_sgpr, size):
    if off_sgpr is None:
        c(f's_mov_b32 s{d}, s{plo}\ns_mov_b32 s{d+1}, s{plo+1}\ns_mov_b32 s{d+2}, {size}')
    else:
        c(f's_add_u32 s{d}, s{plo}, s{off_sgpr}\ns_addc_u32 s{d+1}, s{plo+1}, 0\ns_sub_u32 s{d+2}, {size}, s{off_sgpr}')
    c(f's_mov_b32 s{d+3}, 0x20000')

FS = {'n': 0, 'names': []}
def stamp(c, name, lvl=1):
    if PROF < lvl: return
    rot = [12, 94, 0]; n = FS['n']
    if n >= 2: c(f'v_writelane_b32 v{vPR}, s{rot[(n-2) % 3]}, {n}')
    c(f'{"s_memrealtime" if env("RT", 0) else "s_memtime"} s[{rot[n % 3]}:{rot[n % 3]+1}]'); FS['n'] += 1; FS['names'].append(name)
def prof_out(c, typ):
    if not PROF: return
    c('s_waitcnt vmcnt(0)')
    stamp(c, 'drain'); stamp(c, 'x'); stamp(c, 'x')
    c(f's_memrealtime s[12:13]\ns_waitcnt lgkmcnt(0)\nv_writelane_b32 v{vPR}, s12, 63')
    c(f's_lshl_b32 s3, s2, 3\ns_add_u32 s3, s3, s{sW}\ns_lshl_b32 s3, s3, 8\ns_add_u32 s3, s3, {PRB}')
    c(f'v_and_b32 v144, 63, v0\nv_lshlrev_b32 v144, 2, v144')
    c(f'buffer_store_dword v{vPR}, v144, {srd(SWS)}, s3 offen')

DU = dict(parts=2, D=vDA, K=sKA, pat=vPDU, dparts=2, ts=2048)
STEPS = {
    'F': [DU, DU, DU],
    'H': [dict(parts=1, D=vDB, K=sKB, pat=vPX, dparts=1, ts=2048), dict(parts=2, D=vDB, K=sKB, pat=vPX, dparts=2, ts=2048), dict(parts=1, D=vDA, K=sKA, pat=vPDU, dparts=1, ts=1024)],
}
CFG = {
    'F': dict(bars=eval(env('FBARS', '[0,1,2,3,4,5,7,8,10,12,14,16,18,20]')), dgap=2, xrate=env('XRF', 0.6), init={0: 7, 1: 8, 2: 9}, reserved={6}, fast=env('FASTF', 14),
              stbar=8, relbar={10: [6]}, clrbar=None, clr0=env('CLR0F', 62), clrgap=env('CLRGF', 8), pollu=env('POLLUF', 82), cfbar=12, abar=env('ABAR', 14), pollA=env('POLLAF', 128), habar=env('HABAR', 18),
              ring=env('RINGF', 5), w2bar=env('W2BAR', 10), bud=[2, env('BF1', 5.5), env('BF2', 4.5)]),
    'H': dict(bars=eval(env('HBARS', '[0,2,4,5,7,8,9,10,11,12,13,14,16,18]')), dgap=2, maxgap=env('MAXGAP', 4), xrate=1.2, init={0: 7, 1: 7.5, 2: 8, 3: 8.5, 4: 9},
              reserved={3, 4, 5, 6}, scrbar=16, phibar=2, fast=env('FASTH', 10), relbar={}, holdslot=(9, 8), clrbar=8, clr0=8, clrgap=5,
              pollu=env('POLLUH', 84), cfbar=18, pollA=-1, ring=99, w2bar=99, bud=[3.5, env('BH1', 4.8), env('BH2', 5.5)]),
}

def dma_off(c, stride, D, L, T, clip):
    c(f'''
    v_lshrrev_b32 v{T}, 3, v0
    v_bfe_u32 v{T+1}, v{L}, 4, 1
    v_and_b32 v{T+2}, 7, v{L}
    v_lshlrev_b32 v{T+1}, 2, v{T+1}
    v_xor_b32 v{T+1}, v{T+1}, v{T+2}
    v_xor_b32 v{T+2}, 2, v{T+1}
    v_mul_u32_u24 v{T}, {stride}, v{T}
    ''')
    if clip: c(f'v_min_u32 v{T+1}, 6, v{T+1}\nv_min_u32 v{T+2}, 6, v{T+2}')
    c(f'v_lshl_add_u32 v{D[0]}, v{T+1}, 4, v{T}\nv_lshl_add_u32 v{D[1]}, v{T+2}, 4, v{T}')

def tr_pat(c, kind, L, T):
    c(f'''
    v_lshrrev_b32 v{T}, 5, v{L}
    v_bfe_u32 v{T+1}, v{L}, 2, 2
    v_lshl_add_u32 v{T}, v{T}, 3, v{T+1}
    v_and_b32 v{T+1}, 3, v{L}
    v_lshlrev_b32 v{T+1}, 3, v{T+1}
    v_bfe_u32 v{T+2}, v{L}, 4, 1
    ''')
    if kind in ('du', 'head'):
        c(f'''
        v_bfe_u32 v{T+3}, v{L}, 3, 1
        v_lshlrev_b32 v{T+3}, 6, v{T+3}
        v_lshl_add_u32 v{T+1}, v{T+2}, 5, v{T+1}
        s_mul_i32 s{sTMP}, s{sG}, {64 if kind == 'du' else 56}
        v_add_u32 v{T+1}, s{sTMP}, v{T+1}
        v_xor_b32 v{T+1}, v{T+1}, v{T+3}
        v_lshl_add_u32 v{vPDU if kind == 'du' else vPX}, v{T}, 7, v{T+1}
        ''')
    else:
        c(f'''
        v_xor_b32 v{T+3}, s{sG}, v{T+2}
        v_lshl_add_u32 v{T+1}, v{T+3}, 5, v{T+1}
        v_lshl_add_u32 v{T+1}, v{T+2}, 12, v{T+1}
        v_lshl_add_u32 v{vPDU}, v{T}, 6, v{T+1}
        ''')

def dma(c, typ, slab, slot, part, so=None):
    step, q = divmod(slab, 7); S = STEPS[typ][step]
    c(f's_add_u32 m0, s{sM0}, {int(slot*16384) + part*8192}')
    if so is None: so = S['K'] + q
    c.p(P('slotend'))
    c(f'buffer_load_dwordx4 v{S["D"][part]}, {srd(SW[step][part])}, s{so} offen lds', tag=f'W{slab}')

sW2 = 83; sHD = 84; sV = sJ
def w2_consts(q):
    if q == 4: b, o, d = 1, 0, 0
    elif q < 7:
        du, par = {0: (0, 0), 1: (0, 1), 2: (1, 0), 3: (1, 1), 5: (2, 0), 6: (2, 1)}[q]
        b, o, d = 0, 768 * par + 64 * du, 768 * (1 - 2 * par)
    else: b, o, d = 3, q - 7, 1 - 2 * (q - 7)
    return b, o, d * env('PARITY', 1)

def dma2(c, q, slots, k):
    b, off, d = w2_consts(q)
    m = 896 if q < 7 else 56 * 896
    if k == 0:
        c(f's_mul_i32 s{sMT}, s{sG}, {(slots[1]-slots[0])*16384}\ns_add_u32 s{sMT}, s{sMT}, s{sM2}')
        c(f's_mul_i32 s{sW2}, s{sV}, {d*m}\ns_add_u32 s{sW2}, s{sW2}, s{sWB[b]}')
    c(f's_add_u32 m0, s{sMT}, {slots[0]*16384 + k*1024}')
    c(f's_add_u32 s{sD}, s{sW2}, {off*m + 8*k*896}')
    c(f'buffer_load_dwordx4 v{vD2}, {srd(SWD if q < 7 else SWO)}, s{sD} offen lds', tag=f'V{q}')

def xloads(c, g, tag=None):
    for q in range(7):
        c(f'buffer_load_dwordx4 {vr(80 + 28*g + 4*q, 4)}, v{28+g}, {srd(SX)}, s{sXO+q} offen', tag)

LNC = f'''
    v_mov_b32 v56, 0x3f803f80
    v_mov_b32 v57, 0x3f803f80
    v_and_b32 v34, 1, v27
    v_lshlrev_b32 v35, 4, v34
    v_mov_b32 v36, 0x3f80
    v_lshlrev_b32 v36, v35, v36
    v_and_b32 v35, 2, v27
    v_cmp_eq_u32 s[62:63], 0, v35
    v_cmp_eq_u32 s[60:61], 0, v34
    v_cndmask_b32 v58, 0, v36, s[62:63]
    v_cndmask_b32 v59, v36, 0, s[62:63]
    v_bfe_u32 v36, v32, 1, 3
    v_xor_b32 v36, v36, v31
    v_lshlrev_b32 v36, 4, v36
    v_lshl_add_u32 v40, v32, 7, v36
    v_add_u32 v41, 0x10000, v40
    v_xor_b32 v42, 0x2000, v40
    v_xor_b32 v43, 0x2000, v41
    v_xor_b32 v33, 64, v32
    v_mul_u32_u24 v29, 896, v33
    v_lshl_add_u32 v29, v31, 4, v29
    v_lshlrev_b32 v{vL16}, 4, v27
    s_and_b32 s{sB}, s{sW}, 3
'''

def top_common(c):
    ROTC = {2: f's_lshl_b32 s{sT}, s{sT}, 1', 0: f's_mov_b32 s{sT}, 0', 1: f's_and_b32 s{sT}, s{sT}, 1\ns_mul_i32 s{sT}, s{sT}, 3', 3: 's_nop 0'}[env('ROTM', 0)]
    sST = sKB + 6; sCL = sKB + 5
    c(f'''
    s_getpc_b64 s[{SWS}:{SWS+1}]
    KM_PC:
    s_mov_b32 s{SWS+2}, KM_EXIT-KM_PC
    s_mov_b32 s{SWS+3}, 0x20000
    s_lshr_b32 s{sTMP}, s2, 3
    s_mul_i32 s{sTMP}, s{sTMP}, 1280
    v_add_u32 v35, 6, v0
    v_lshlrev_b32 v34, 7, v0
    v_lshrrev_b32 v35, 4, v35
    v_lshl_add_u32 v34, v35, 20, v34
    ''')
    c(f'buffer_load_dword v249, v34, {srd(SWS)}, s{sTMP} offen', 'raw')
    c(f'''
    v_lshrrev_b32 v26, 6, v0
    v_and_b32 v27, 63, v0
    v_readfirstlane_b32 s{sW}, v26
    s_bfe_u32 s{sROT}, s2, 0x20001
    s_lshr_b32 s{sT}, s2, 6
    s_lshl_b32 s{sI}, s{sROT}, 2
    s_add_u32 s{sI}, s{sI}, s{sT}
    {ROTC}
    s_add_u32 s{sROT}, s{sROT}, s{sT}
    s_and_b32 s{sT}, s2, 8
    s_lshr_b32 s{sT}, s{sT}, 1
    s_add_u32 s{sROT}, s{sROT}, s{sT}
    s_lshr_b32 s{sT}, s2, 2
    s_andn2_b32 s{sT}, s{sT}, 1
    s_add_u32 s{sT}, s{sT}, s{sW}
    s_and_b32 s{sT}, s{sT}, 15
    s_lshl_b32 s{sT}, s{sT}, 3
    s_lshl_b32 s{sTMP}, s{sROT}, 7
    ''')
    for q in range(7):
        if q: c(f's_add_u32 s{sTMP}, s{sXO+q-1}, 128')
        c(f'''
        s_cmp_ge_u32 s{sTMP}, 896
        s_cselect_b32 s{sTMP2}, 896, 0
        s_sub_u32 s{sXO+q}, s{sTMP}, s{sTMP2}
        ''')
    c(f'''
    v_lshrrev_b32 v30, 3, v27
    v_and_b32 v31, 7, v27
    v_add_u32 v32, s{sT}, v30
    v_mul_u32_u24 v28, 896, v32
    v_lshl_add_u32 v28, v31, 4, v28
    s_lshr_b32 s{sG}, s{sW}, 2
    s_lshl_b32 s{sM0}, s{sW}, 10
    s_and_b32 s{sJ}, s2, 1
    s_lshl_b32 s{sJ}, s{sJ}, 2
    s_bfe_u32 s{sT}, s2, 0x20003
    s_add_u32 s{sJ}, s{sJ}, s{sT}
    s_mul_i32 s{sH[0]}, s{sJ}, 192
    s_add_u32 s{sH[0]}, s{sH[0]}, 256
    s_lshl_b32 s{sTMP2}, s{sH[0]}, 1
    s_mul_i32 s{sH[1]}, s{sJ}, 112
    s_add_u32 s{sTMP}, s{sH[1]}, 896
    s_movk_i32 s{sST}, 3584
    s_bitcmp1_b32 s2, 5
    s_cselect_b32 s{sTMP2}, s{sTMP}, s{sTMP2}
    s_cselect_b32 s{sST}, 2688, s{sST}
    s_cselect_b32 s{sCL}, 6, 7
    v_lshrrev_b32 v34, 3, v0
    v_bfe_u32 v35, v27, 4, 1
    v_lshlrev_b32 v35, 2, v35
    v_xor_b32 v35, v35, v31
    v_xor_b32 v36, 2, v35
    v_mul_u32_u24 v34, s{sST}, v34
    v_min_u32 v35, s{sCL}, v35
    v_min_u32 v36, s{sCL}, v36
    v_lshl_add_u32 v{vDA[0]}, v35, 4, v34
    v_lshl_add_u32 v{vDA[1]}, v36, 4, v34
    v_mov_b32 v{vDB[0]}, v{vDA[0]}
    v_mov_b32 v{vDB[1]}, v{vDA[1]}
    s_lshr_b32 s{sCL}, s{sST}, 1
    s_mul_i32 s{sKB}, s{sXO}, s{sCL}
    s_lshl_b32 s{sKB+1}, s{sST}, 5
    s_add_u32 s{sKB+1}, s{sKB+1}, s{sKB}
    s_mul_i32 s{sST}, s{sST}, 448
    s_mul_i32 s{sTMP}, s{sI}, 114688
    s_bitcmp1_b32 s2, 5
    s_waitcnt lgkmcnt(0)
    s_cselect_b64 s[52:53], s[6:7], s[14:15]
    ''')
    if PROF: c(f'v_writelane_b32 v{vPR}, s66, 0\nv_writelane_b32 v{vPR}, s92, 1')
    mk_srd(c, SW[0][0], 52, sTMP2, f's{sST}')
    mk_srd(c, SW[0][1], 16, sTMP2, 448 * 3584)
    mk_srd(c, SX, 4, sTMP, 2048 * 896)
    c(f's_cmp_lg_u32 s{sG}, 0\ns_cbranch_scc1 KM_Y')
    if env('PFQ', 0): share_pf(c, SPHI, 6, 448 * 2688, 37, 2, 0, 34, 248, 'raw')
    for part in range(2):
        if part: c('s_bitcmp1_b32 s2, 5\ns_cbranch_scc1 KM_A')
        for k in range(2):
            c(f's_add_u32 m0, s{sM0}, {7*16384 + part*8192 + k*4096}')
            c(f'buffer_load_dwordx4 v{vDA[part]}, {srd(SW[0][part])}, s{sKB+k} offen lds', 'raw')
    c('KM_A:')
    xloads(c, 0, 'raw')
    c('KM_Y:')
    c(LNC)
    c('s_bitcmp1_b32 s2, 5\ns_cbranch_scc0 KM_SF\nKM_SETUP:\nKM_X0:')
    xloads(c, 0)
    c('KM_X1:')
    xloads(c, 1)
    stamp(c, 'g1', 2)
    for q in range(7): c(f's_mul_i32 s{sKB+q}, s{sXO+q}, 1344\ns_mul_i32 s{sKA+q}, s{sXO+q}, 1792')
    layernorm(c)
    stamp(c, 'ln')

def dma_both(c, typ, s, slot, part):
    so = STEPS[typ][0]['K'] + s
    dma(c, typ, s, slot, part, so=so)
    c(f's_add_u32 s{sD}, s{so}, {32 * (3584 if typ == "F" else 2688)}')
    dma(c, typ, s, slot + 0.25, part, so=sD)

def hreg(q): return XF + 16 * (q if q < 7 else q - 7)
def hpre(q):
    b, off, d = w2_consts(q); m = 64 if q < 7 else 4096
    return f's_mul_i32 s{sHD}, s{sV}, {d*m}\ns_add_u32 s{sHD}, s{sHD}, s{sHB[b]}\ns_add_u32 s{sHD}, s{sHD}, {off*m}'
def hloads(q): return [f'buffer_load_dwordx4 {vr(hreg(q)+4*t,4)}, v{vL16}, {srd(SWS)}, s{sHD} offen offset:{t*1024} sc1' for t in range(4)]
def hgroups(q):
    return [Stream()((hpre(q) + '\n' if t == 0 else '') + l) for t, l in enumerate(hloads(q))]

def prologue(c, typ):
    st0 = STEPS[typ][0]
    init = [(s, slot, part) for s, slot in CFG[typ]['init'].items() for part in range(st0['dparts']) if s > 0]
    c(f'v_lshlrev_b32 v{vLS+2}, 2, v32\nv_add_u32 v{vLS+2}, {STAT[typ]}, v{vLS+2}')
    if typ == 'H': stat_put(c)
    mk_srd(c, SDBG, 22, None, 256)
    c(f's_cmp_lg_u32 s{sG}, 0\ns_cbranch_scc1 KM_B{typ}')
    c.p(BEGIN('old'))
    if typ == 'F':
        c(f'''
        s_or_b32 s{sTMP}, s2, s{sW}
        s_cmp_eq_u32 s{sTMP}, 0
        s_cselect_b32 s{sTMP}, 0, 0x40000000
        s_add_u32 s{sTMP}, s{sTMP}, {CNT}
        v_lshlrev_b32 v34, 3, v{vL16}
        v_mov_b32 v35, 0
        ''')
        c(f'buffer_store_dword v35, v34, {srd(SWS)}, s{sTMP} offen {ST}', tag='W1')
    for n, (s, slot, part) in enumerate(init):
        dma_both(c, typ, s, slot, part)
        if typ == 'H' and n == 0:
            c(f's_mul_i32 s{sTMP}, s{sJ}, 3136')
            mk_srd(c, SPHI, 8, sTMP, 16 * 1568)
            c(f'''
            s_mul_i32 s{sTMP}, s{sW}, 800
            s_add_u32 m0, s{sTMP}, {MISC}
            s_mov_b32 exec_hi, 0x3ffff
            ''')
            c(f'buffer_load_dwordx4 v{vL16}, {srd(SPHI)}, s{sTMP} offen lds', tag='W2')
            c('s_mov_b32 exec_hi, -1')
    mall_prefetch(c, typ)
    c.p(END('old'))
    c(f'KM_B{typ}:\ns_nop 1')

def setup_block(typ):
    c = Stream()
    c(f'KM_S{typ}:')
    tr_pat(c, 'du' if typ == 'F' else 'head', 27, 34)
    c(f'''
    v_and_b32 v34, 31, v27
    s_lshl_b32 s{sTMP}, s{sB}, 5
    v_add_u32 v34, s{sTMP}, v34
    v_bfe_u32 v35, v27, 1, 3
    v_lshrrev_b32 v36, 5, v27
    v_xor_b32 v35, v35, v36
    v_lshlrev_b32 v35, 4, v35
    v_lshl_add_u32 v{vXA}, v34, 7, v35
    v_xor_b32 v{vXA+1}, 32, v{vXA}
    v_xor_b32 v{vXA+2}, 64, v{vXA}
    v_xor_b32 v{vXA+3}, 96, v{vXA}
    ''')
    if typ == 'H':
        c(f's_add_u32 s{sTMP2}, s{sH[1]}, 1792')
        mk_srd(c, SW[1][0], 6, sTMP2, 448 * 2688)
        mk_srd(c, SW[1][1], 6, sH[1], 448 * 2688)
    late_setup(c, typ)
    clear_prep(c, typ)
    c(f's_cmp_lg_u32 s{sG}, 0\ns_cbranch_scc1 KM_X0\ns_branch KM_X1')
    return finish(c)

def layernorm(c):
    M4 = 'v_mfma_f32_4x4x4_16b_bf16'
    SA = [60, 64]; QA = [68, 72]; CM = 76; DT = [136, 140, 144, 148]
    inv = hx(f2u(1.0 / 448))
    for g in range(2):
        R = 80 + 28 * g
        for d in range(14):
            if d == 1 and g == 0: stamp(c, 'x0')
            if d == 13 and g == 1: stamp(c, 'x1')
            a = d & 1
            c(f'{M4} {vr(SA[a],4)}, v[56:57], {vr(R+2*d,2)}, ' + ('0' if d < 2 else vr(SA[a], 4)))
            c(f'{M4} {vr(QA[a],4)}, {vr(R+2*d,2)}, {vr(R+2*d,2)}, ' + ('0' if d < 2 else vr(QA[a], 4)))
        S = SA[0]; Q = QA[0]
        c(f'v_add_f32 v{S}, v{S}, v{SA[1]}')
        for k in range(4): c(f'v_add_f32 v{Q+k}, v{Q+k}, v{QA[1]+k}')
        c(f'v_add_f32_dpp v{S}, v{S}, v{S} quad_perm:[1,0,3,2] row_mask:0xf bank_mask:0xf')
        c(f'v_cndmask_b32 v{Q}, v{Q+1}, v{Q}, s[60:61]\nv_cndmask_b32 v{Q+2}, v{Q+3}, v{Q+2}, s[60:61]')
        c(f'v_add_f32_dpp v{S}, v{S}, v{S} quad_perm:[2,3,0,1] row_mask:0xf bank_mask:0xf')
        c(f'v_cndmask_b32 v{Q}, v{Q+2}, v{Q}, s[62:63]')
        c(f'v_add_f32_dpp v{S}, v{S}, v{S} row_half_mirror row_mask:0xf bank_mask:0xf')
        c(f'''
        v_mul_f32 v{S}, {hx(f2u(-1.0 / 448))}, v{S}
        v_cvt_pk_bf16_f32 v{S+1}, v{S}, v{S}
        v_and_b32 v{CM}, 0xffff0000, v{S+1}
        v_and_b32 v{CM+1}, 0xffff0000, v{S+1}
        v_and_b32 v{CM+2}, 0xffff0000, v{S+1}
        v_and_b32 v{CM+3}, 0xffff0000, v{S+1}
        ''')
        def cen(d): c(f'{M4} {vr(DT[d&3],4)}, v[58:59], {vr(R+2*d,2)}, {vr(CM,4)}')
        cen(0); cen(1)
        for d in range(14):
            if d + 2 < 14: cen(d + 2)
            t = DT[d & 3]
            c(f'v_cvt_pk_bf16_f32 v{R+2*d}, v{t}, v{t+1}\nv_cvt_pk_bf16_f32 v{R+2*d+1}, v{t+2}, v{t+3}')
            if d & 1:
                q = d >> 1
                a, off = (40 + 2 * g, q * 16384) if q < 4 else (41 + 2 * g, (q - 4) * 16384)
                c(f'ds_write_b128 v{a}, {vr(R+4*q, 4)} offset:{off}')
        for dpp in ('quad_perm:[1,0,3,2]', 'quad_perm:[2,3,0,1]', 'row_half_mirror'):
            c(f'v_add_f32_dpp v{Q}, v{Q}, v{Q} {dpp} row_mask:0xf bank_mask:0xf')
        c(f'''
        v_mul_f32 v{Q}, {inv}, v{Q}
        v_fma_f32 v{Q}, -v{S}, v{S}, v{Q}
        v_max_f32 v{Q}, 0, v{Q}
        v_cvt_pk_bf16_f32 v{Q}, v{Q}, v{Q}
        v_and_b32 v{Q}, 0xffff0000, v{Q}
        v_add_f32 v{Q}, {hx(f2u(1e-5))}, v{Q}
        v_cvt_pk_bf16_f32 v{Q}, v{Q}, v{Q}
        v_and_b32 v{Q}, 0xffff0000, v{Q}
        v_sqrt_f32 v{Q}, v{Q}
        v_cvt_pk_bf16_f32 v{Q}, v{Q}, v{Q}
        v_and_b32 v{vLS+g}, 0xffff0000, v{Q}
        ''')

def stat_put(f):
    f(f'ds_write_b32 v{vLS+2}, v{vLS}', tag='st')
    f(f'v_xor_b32 v{vLS+2}, 256, v{vLS+2}')
    f(f'ds_write_b32 v{vLS+2}, v{vLS+1}', tag='st')

def stat_get(f, typ):
    f(f'''
    v_and_b32 v{vC1}, 31, v0
    s_lshl_b32 s{sTMP}, s{sB}, 7
    s_add_u32 s{sTMP}, s{sTMP}, {STAT[typ]}
    v_lshlrev_b32 v{vC1}, 2, v{vC1}
    v_add_u32 v{vC1}, s{sTMP}, v{vC1}
    ''')
    if typ == 'F': f.p(SYNC('stbar'))
    f(f'ds_read_b32 v{vSD}, v{vC1}')
    f.p(GAP(1))
    f(f'''
    v_rcp_f32 v{vRL}, v{vSD}
    v_mul_f32 v{vSD2}, v{vSD}, v{vSD}
    v_mul_f32 v{vK0}, {hx(f2u(GK0))}, v{vRL}
    v_mul_f32 v{vC1}, v{vRL}, v{vRL}
    v_mul_f32 v{vC1}, {hx(f2u(0.044715))}, v{vC1}
    v_mul_f32 v{vC1}, v{vK0}, v{vC1}
    v_mul_f32 v{vRL}, {hx(f2u(LOG2E))}, v{vRL}
    ''')

def kf_addr(c, A, T):
    c(f'''
    v_and_b32 v{T}, 7, v0
    v_bfe_u32 v{A}, v0, 5, 1
    v_lshlrev_b32 v{A}, 2, v{A}
    v_lshl_add_u32 v{A}, v{T}, 4, v{A}
    v_and_b32 v{T+1}, 24, v0
    v_lshlrev_b32 v{T+1}, 26, v{T+1}
    v_or_b32 v{A}, v{A}, v{T+1}
    ''')

def late_setup(c, typ):
    T = 34; L = 27
    if typ == 'F':
        c(f's_add_u32 s{sH[1]}, s{sH[0]}, 64\ns_lshl_b32 s{sTMP2}, s{sH[1]}, 1')
        mk_srd(c, SW[1][0], 14, sTMP2, 448 * 3584)
        mk_srd(c, SW[1][1], 16, sTMP2, 448 * 3584)
        c(f's_add_u32 s{sH[2]}, s{sH[0]}, 128\ns_lshl_b32 s{sTMP2}, s{sH[2]}, 1')
        mk_srd(c, SW[2][0], 14, sTMP2, 448 * 3584)
        mk_srd(c, SW[2][1], 16, sTMP2, 448 * 3584)
    else:
        c(f's_mov_b32 s{sHI}, 0\ns_mov_b32 s{sHI+1}, -1')
        c(f'''
        v_bfe_u32 v{T}, v{L}, 3, 2
        v_and_b32 v{T+1}, 3, v{L}
        v_lshl_add_u32 v{T}, v{T}, 2, v{T+1}
        v_bfe_u32 v{T+1}, v{L}, 2, 1
        v_mad_u32_u24 v{T}, v{T+1}, 14, v{T}
        v_min_u32 v{T}, 27, v{T}
        v_lshrrev_b32 v{T+1}, 5, v{L}
        v_mul_u32_u24 v{T+1}, 224, v{T+1}
        v_lshl_add_u32 v{T}, v{T}, 1, v{T+1}
        s_mul_i32 s{sTMP}, s{sG}, 1568
        s_add_u32 s{sTMP}, s{sTMP}, {MISC}
        v_add_u32 v47, s{sTMP}, v{T}
        ''')
        c(f'''
        s_lshl_b32 s{sH[2]}, s{sJ}, 5
        s_lshl_b32 s{sTMP2}, s{sJ}, 6
        s_cmp_eq_u32 s{sG}, 0
        s_cselect_b64 s[52:53], s[14:15], s[16:17]
        ''')
        mk_srd(c, SW[2][0], 52, sTMP2, 448 * 3584)
        c(f'''
        v_bfe_u32 v{T}, v0, 2, 6
        v_mul_u32_u24 v{T}, 3584, v{T}
        s_lshl_b32 s{sTMP}, s{sG}, 1
        v_and_b32 v{T+1}, 3, v{L}
        v_xor_b32 v{T+1}, s{sTMP}, v{T+1}
        v_lshl_add_u32 v{vDA[0]}, v{T+1}, 4, v{T}
        ''')
        tr_pat(c, 'half', L, T)
    mk_srd(c, SWS, 24, None, WS_END)
    c(f'''
    s_lshl_b32 s{sTMP}, s{sI}, 2
    s_add_u32 s{sTMP}, s{sTMP}, s{sB}
    s_mul_i32 s{sTMP2}, s{sTMP}, {144*1024}
    ''')
    for step in ([0, 1, 2] if typ == 'F' else [2]):
        c(f'''
        s_lshl_b32 s{sH[step]}, s{sH[step]}, 6
        s_add_u32 s{sH[step]}, s{sH[step]}, s{sTMP2}
        s_lshl_b32 s{sT}, s{sG}, {11 if STEPS[typ][step]['parts'] == 2 else 10}
        s_add_u32 s{sH[step]}, s{sH[step]}, s{sT}
        ''')
    if typ == 'H':
        c(f'''
        s_lshl_b32 s{sROT}, s{sJ}, 1
        s_add_u32 s{sROT}, s{sROT}, s{sG}
        s_lshl_b32 s{sO}, s{sROT}, 11
        s_add_u32 s{sO}, s{sO}, s{sTMP2}
        s_add_u32 s{sO}, s{sO}, {HB + 112*1024}
        s_lshl_b32 s{sKPR}, s{sROT}, 2
        s_add_u32 s{sKPR}, s{sKPR}, s{sB}
        s_lshl_b32 s{sKPR}, s{sKPR}, 15
        s_add_u32 s{sKPR}, s{sKPR}, {KP}
        s_lshl_b32 s{sTMP}, s{sI}, 11
        s_add_u32 s{sKPW}, s{sKPR}, s{sTMP}
        s_lshl_b32 s{sTMP}, s{sI}, 7
        s_add_u32 s{sKPR}, s{sKPR}, s{sTMP}
        s_lshl_b32 s{sKFR}, s{sROT}, 12
        s_add_u32 s{sKFR}, s{sKFR}, {KF}
        s_and_b32 s{sKFW}, s{sB}, 1
        s_lshl_b32 s{sKFW}, s{sKFW}, 1
        s_lshr_b32 s{sTMP}, s{sI}, 3
        s_add_u32 s{sKFW}, s{sKFW}, s{sTMP}
        s_lshl_b32 s{sKFW}, s{sKFW}, 10
        s_lshr_b32 s{sTMP}, s{sB}, 1
        s_lshl_b32 s{sTMP}, s{sTMP}, 8
        s_add_u32 s{sKFW}, s{sKFW}, s{sTMP}
        s_and_b32 s{sTMP}, s{sI}, 1
        s_lshl_b32 s{sTMP}, s{sTMP}, 7
        s_add_u32 s{sKFW}, s{sKFW}, s{sTMP}
        s_bfe_u32 s{sTMP}, s{sI}, 0x10001
        s_lshl_b32 s{sTMP}, s{sTMP}, 9
        s_add_u32 s{sKFW}, s{sKFW}, s{sTMP}
        s_bfe_u32 s{sTMP}, s{sI}, 0x10002
        s_lshl_b32 s{sTMP}, s{sTMP}, 3
        s_add_u32 s{sKFW}, s{sKFW}, s{sTMP}
        s_add_u32 s{sKFW}, s{sKFW}, s{sKFR}
        ''')
        c(f'''
        s_mul_i32 s{sTMP}, s{sG}, 29696
        s_add_u32 s{sTMP}, s{sTMP}, {SCR}
        s_lshl_b32 s{sTMP2}, s{sB}, 5
        v_and_b32 v{T}, 31, v{L}
        v_add_u32 v{T}, s{sTMP2}, v{T}
        v_mul_u32_u24 v{T}, 232, v{T}
        v_lshrrev_b32 v{T+1}, 5, v{L}
        v_lshl_add_u32 v{T}, v{T+1}, 3, v{T}
        v_add_u32 v{vSW}, s{sTMP}, v{T}
        v_bfe_u32 v{T}, v{L}, 2, 3
        v_lshlrev_b32 v{T}, 2, v{T}
        v_lshl_add_u32 v{T}, v{T+1}, 1, v{T}
        v_mul_u32_u24 v{T}, 232, v{T}
        v_and_b32 v{T+1}, 3, v{L}
        v_lshl_add_u32 v{T}, v{T+1}, 3, v{T}
        v_add_u32 v{T}, s{sTMP}, v{T}
        s_and_b32 s{sTMP}, s{sB}, 1
        s_lshl_b32 s{sTMP}, s{sTMP}, 6
        v_add_u32 v{vSA}, s{sTMP}, v{T}
        s_lshr_b32 s{sTMP}, s{sB}, 1
        s_lshl_b32 s{sTMP}, s{sTMP}, 5
        s_add_u32 s{sTMP}, s{sTMP}, 128
        v_add_u32 v{vSB}, s{sTMP}, v{T}
        ''')

def phi_load(c):
    for tp in range(2):
        for e in range(8):
            d = 16 * tp + 8 * (e >> 2) + (e & 3)
            c(f'ds_read_u16 v{(vT+6 if e & 1 else vPHI)+4*tp+(e>>1)}, v47 offset:{d*56}')
    c.p(GAP(2))
    for k in range(8): c(f'v_lshl_or_b32 v{vPHI+k}, v{vT+6+k}, 16, v{vPHI+k}')
    for k in (6, 7): c(f'v_cndmask_b32 v{vPHI+k}, v{vPHI+k}, 0, s[{sHI}:{sHI+1}]')

def clear_prep(c, typ):
    if typ == 'F': return
    for k in range(4): c(f'v_mov_b32 v{48+k}, -1')
    kf_addr(c, vCF, 34)

def clears(typ):
    M = 48
    if typ == 'F': return []
    if typ == 'F':
        return [Stream()(f'buffer_store_dwordx4 {vr(M,4)}, v{vL16}, {srd(SWS)}, s{sH[k]} offen offset:{off} {ST}', tag='h0') for k in (1, 2) for off in (0, 1024)]
    def st(s, off): return Stream()(f'buffer_store_dwordx4 {vr(M,4)}, v{vL16}, {srd(SWS)}, s{s} offen offset:{off} {ST}', tag='clr')
    g = [Stream()(f'buffer_store_dword v{M}, v{vCF}, {srd(SWS)}, s{sKFW} offen {ST}', tag='clr'), st(sKPW, 0), st(sKPW, 1024)]
    g[-1](f'''
    s_and_b32 s{sD}, s2, 1
    s_lshl_b32 s{sD}, s{sD}, 6
    v_lshlrev_b32 v{vCF}, 20, v0
    v_add_u32 v{vCF}, s{sD}, v{vCF}
    v_mov_b32 v{vCF+1}, 1
    ''')
    return g

def flag_setup(c):
    c(f'''
    s_lshl_b32 s{sD}, s{sI}, 9
    s_add_u32 s{sD}, s{sD}, {CNT}
    v_mov_b32 v{vCF}, s{sD}
    v_mov_b32 v{vCF+1}, {hx(OOB)}
    v_cmp_eq_u32 vcc, 0, v0
    v_cndmask_b32 v{vCF}, v{vCF+1}, v{vCF}, vcc
    v_cndmask_b32 v{vRQ}, 0, 1, vcc
    ''')
def arrive(c, s): c(f'buffer_atomic_add v{vRQ}, v{vCF}, {srd(SWS)}, 0 offen offset:{128*s} sc1')
def poll(c, s): c(f'buffer_load_dword v{vCF+1}, v{vCF}, {srd(SWS)}, 0 offen offset:{128*s} sc1')
def poll_check(c, s, typ):
    n = f'P{s}{typ}'; sh = 4 if s == 1 else 3
    c(f'v_lshrrev_b32 v{vCF+1}, {sh}, v{vCF+1}\nv_cmp_gt_u32 vcc, v{vRQ}, v{vCF+1}\ns_cbranch_vccnz R_{n}\nB_{n}:')
    RETRY.append(f'''R_{n}:
    s_mov_b32 s{sTMP2}, 0x8000
L_{n}:
    s_sleep {env('PSLEEP', 6)}
    buffer_load_dword v{vCF+1}, v{vCF}, {srd(SWS)}, 0 offen offset:{128*s} sc1
    s_waitcnt vmcnt(0)
    v_lshrrev_b32 v{vCF+1}, {sh}, v{vCF+1}
    v_cmp_gt_u32 vcc, v{vRQ}, v{vCF+1}
    s_cbranch_vccz B_{n}
    s_sub_u32 s{sTMP2}, s{sTMP2}, 1
    s_cmp_lg_u32 s{sTMP2}, 0
    s_cbranch_scc1 L_{n}
    s_branch B_{n}''')

def share_pf(c, quad, ptr, size, nl, sidx, tid, T, dst, tag=None):
    mk_srd(c, quad, ptr, None, size)
    c(f'''
    s_mul_i32 s{sD}, s{sidx}, {nl*128}
    v_add_u32 v{T+1}, {512-nl}, v{tid}
    v_lshlrev_b32 v{T}, 7, v{tid}
    v_lshrrev_b32 v{T+1}, 9, v{T+1}
    v_lshl_add_u32 v{T}, v{T+1}, 22, v{T}
    ''')
    c(f'buffer_load_dword v{dst}, v{T}, {srd(quad)}, s{sD} offen', tag)

def f_index(c, d):
    c(f's_lshr_b32 s{d}, s2, 6\ns_lshl_b32 s{d}, s{d}, 5\ns_and_b32 s{sD}, s2, 31\ns_add_u32 s{d}, s{d}, s{sD}')

def mall_prefetch(c, typ):
    if typ == 'H' or not env('PFW1', 1): return
    f_index(c, sTMP)
    c('v_xor_b32 v33, 128, v0')
    if env('PFQ2', 1): share_pf(c, SPHI, 6, 448 * 2688, 74, sTMP, 33, 34, 252)
    share_pf(c, SPHI, 14, 448 * 3584, 98, sTMP, 0, 34, 250)
    share_pf(c, SPHI, 16, 448 * 3584, 98, sTMP, 33, 34, 251)

def w2_prefetch(c):
    f_index(c, 93)
    c('v_xor_b32 v17, 128, v0')
    share_pf(c, 88, 18, 1792 * 896, 98, 93, 0, 15, 24)
    share_pf(c, 88, 10, 448 * 896, 25, 93, 17, 15, 25)

def l2_prefetch(c, rnd):
    if rnd == 0:
        mk_srd(c, 88, 18, None, 1792 * 896)
        c(f'''
        s_lshr_b32 s86, s2, 6
        s_lshl_b32 s86, s86, 2
        s_bfe_u32 s85, s2, 0x20003
        s_add_u32 s86, s86, s85
        s_mul_i32 s85, s86, {112*128}
        v_and_b32 v15, 7, v0
        v_lshrrev_b32 v16, 3, v0
        v_lshl_add_u32 v15, v15, 6, v16
        v_add_u32 v16, {512-112}, v15
        v_lshlrev_b32 v15, 7, v15
        v_lshrrev_b32 v16, 9, v16
        v_lshl_add_u32 v15, v16, 22, v15
        ''')
    elif rnd == 1:
        c(f'''
        s_lshr_b32 s85, s86, 1
        s_mul_i32 s85, s85, {192*896}
        s_and_b32 s87, s86, 1
        s_mul_i32 s87, s87, {32*896}
        s_add_u32 s85, s85, s87
        s_add_u32 s85, s85, {384*896}
        ''')
    elif rnd == 3:
        mk_srd(c, 88, 10, None, 448 * 896)
        c(f's_mul_i32 s85, s86, {196*128}')
    else: c(f's_add_u32 s85, s85, {(112 if rnd == 2 else 84)*128}')
    c(f'buffer_load_dword v{22 + (rnd & 1)}, v15, {srd(88)}, s85 offen')

def p2_setup(c, typ):
    T = vT + 4
    T2 = vD2
    c(f'''
    s_and_b32 s{sCT}, s{sJ}, 3
    {f's_add_u32 s{sCT}, s{sCT}, 4' if typ == 'H' else ''}
    s_and_b32 s{sTMP}, s{sI}, 3
    s_mul_i32 s{sTMP}, s{sTMP}, {env('CTROT', 2)}
    s_add_u32 s{sTMP}, s{sTMP}, s{sCT}
    s_cmp_ge_u32 s{sTMP}, 7
    s_cselect_b32 s{sTMP2}, 7, 0
    s_sub_u32 s{sTMP}, s{sTMP}, s{sTMP2}
    s_lshl_b32 s{sTMP}, s{sTMP}, 7
    ''')
    mk_srd(c, SWD, 18, sTMP, 1792 * 896)
    mk_srd(c, SWO, 10, sTMP, 448 * 896)
    c(f'''
    s_lshr_b32 s{sTMP2}, s{sJ}, 2
    s_lshl_b32 s{sT}, s{sI}, 1
    s_add_u32 s{sT}, s{sT}, s{sTMP2}
    s_mul_i32 s{sTMP2}, s{sT}, {64*896}
    s_add_u32 s{sTMP}, s{sTMP}, s{sTMP2}
    ''')
    mk_srd(c, SXO, 4, sTMP, 2048 * 896)
    mk_srd(c, SOUT, 20, sTMP, 2048 * 896)
    c(f'''
    s_lshr_b32 s{sG2}, s{sW}, 1
    s_and_b32 s{sTMP}, s{sW}, 1
    s_lshl_b32 s{sT}, s{sT}, 1
    s_add_u32 s{sT}, s{sT}, s{sTMP}
    s_mul_i32 s{sT}, s{sT}, {144*1024}
    s_lshl_b32 s{sM2}, s{sB}, 12
    s_mul_i32 s{sTMP}, s{sTMP}, {32*896}
    v_bfe_u32 v{T}, v0, 3, 3
    v_and_b32 v{T+1}, 7, v0
    v_bfe_u32 v{T2}, v0, 4, 1
    v_lshlrev_b32 v{T2}, 2, v{T2}
    v_xor_b32 v{T+1}, v{T+1}, v{T2}
    v_mul_u32_u24 v{T}, 896, v{T}
    v_lshl_add_u32 v{T}, v{T+1}, 4, v{T}
    v_add_u32 v{vD2}, s{sTMP}, v{T}
    s_mul_i32 s{sHB[0]}, s{sG2}, 192
    s_add_u32 s{sHB[0]}, s{sHB[0]}, 256
    s_lshl_b32 s{sHB[1]}, s{sG2}, 6
    ''')
    for b in range(2):
        c(f's_mul_i32 s{sWB[b]}, s{sHB[b]}, 896\ns_lshl_b32 s{sHB[b]}, s{sHB[b]}, 6\ns_add_u32 s{sHB[b]}, s{sHB[b]}, s{sT}')
    c(f'''
    s_mul_i32 s{sWB[3]}, s{sG2}, {112*896}
    s_lshl_b32 s{sHB[3]}, s{sG2}, 13
    s_add_u32 s{sHB[3]}, s{sHB[3]}, s{sT}
    s_add_u32 s{sHB[3]}, s{sHB[3]}, {112*1024}
    ''')
    if typ == 'H':
        c(f's_cmp_eq_u32 s{sCT}, 7\ns_cselect_b32 s{SWD+2}, 0, s{SWD+2}')
    c(f's_add_u32 s{sV}, s{sCT}, s{sI}\ns_and_b32 s{sV}, s{sV}, 1')
    c.p(DONE('p2'))

def gelu_epi(G, U, n, out_regs, TB=vT):
    f = Stream()
    for i0 in range(0, n, 4):
        idx = list(range(i0, i0 + 4)); T = [TB + k for k in range(4)]
        for k, i in enumerate(idx): f(f'v_mul_f32 v{T[k]}, v{G+i}, v{G+i}')
        for k, i in enumerate(idx): f(f'v_fma_f32 v{T[k]}, v{T[k]}, v{vC1}, v{vK0}')
        for k, i in enumerate(idx): f(f'v_mul_f32 v{T[k]}, v{G+i}, v{T[k]}')
        for k, i in enumerate(idx):
            f(f'v_exp_f32 v{T[k]}, v{T[k]}')
            f(f'v_mul_f32 v{U+i}, v{G+i}, v{U+i}')
        for k, i in enumerate(idx): f(f'v_fma_f32 v{T[k]}, v{T[k]}, v{vSD2}, v{vSD2}')
        for k, i in enumerate(idx): f(f'v_rcp_f32 v{T[k]}, v{T[k]}')
        for k, i in enumerate(idx): f(f'v_mul_f32 v{U+i}, v{U+i}, v{T[k]}')
        for k in (0, 2): f(f'v_cvt_pk_bf16_f32 v{out_regs + (i0+k)//2}, v{U+i0+k}, v{U+i0+k+1}')
    return f

def gelu_du(acc, step, O=vT + 6):
    f = Stream()
    g = gelu_epi(acc, acc + 16, 16, O)
    half = len(g) // 2
    f += g[:half]
    f(f'buffer_store_dwordx4 {vr(O, 4)}, v{vL16}, {srd(SWS)}, s{sH[step]} offen {ST}', tag=f'h{step}')
    f += g[half:]
    f(f'buffer_store_dwordx4 {vr(O+4, 4)}, v{vL16}, {srd(SWS)}, s{sH[step]} offen offset:1024 {ST}', tag=f'h{step}')
    return f

def gelu_half(acc, step, O):
    f = gelu_epi(acc, acc + 8, 8, O, O + 4)
    f(f'buffer_store_dwordx4 {vr(O, 4)}, v{vL16}, {srd(SWS)}, s{sH[step]} offen {ST}', tag=f'h{step}')
    return f

def phi_front(f, A):
    B = vT + 6
    for k in range(8): f(f'v_cvt_pk_bf16_f32 v{B+k}, v{A+2*k}, v{A+2*k+1}')
    f(f'v_mfma_f32_32x32x16_bf16 {vr(A,16)}, {vr(vPHI,4)}, {vr(B,4)}, 0')
    f(f'v_mfma_f32_32x32x16_bf16 {vr(A,16)}, {vr(vPHI+4,4)}, {vr(B+4,4)}, {vr(A,16)}')

def phi_exp(f, A, EP):
    MX, MN, T0, T1 = vT, vT + 1, vT + 2, vT + 3
    f(f'v_max3_f32 v{MX}, v{A}, v{A+1}, v{A+2}')
    f(f'v_max3_f32 v{MN}, -v{A}, -v{A+1}, -v{A+2}')
    f(f'v_max3_f32 v{T0}, v{A+3}, v{A+4}, v{A+5}')
    f(f'v_max3_f32 v{T1}, -v{A+3}, -v{A+4}, -v{A+5}')
    for k in (6, 10):
        f(f'v_max3_f32 v{MX}, v{MX}, v{A+k}, v{A+k+1}')
        f(f'v_max3_f32 v{MN}, v{MN}, -v{A+k}, -v{A+k+1}')
        f(f'v_max3_f32 v{T0}, v{T0}, v{A+k+2}, v{A+k+3}')
        f(f'v_max3_f32 v{T1}, v{T1}, -v{A+k+2}, -v{A+k+3}')
    f(f'v_max_f32 v{MX}, v{MX}, v{T0}')
    f(f'v_max_f32 v{MN}, v{MN}, v{T1}')
    f(f'v_permlane32_swap_b32 v{MX}, v{MN}')
    f(f'v_max_f32 v{MX}, v{MX}, v{MN}')
    f(f'v_mul_f32 v{MX}, v{vRL}, v{MX}')
    f(f'v_mov_b32 v{MN}, v{MX}')
    f(f'v_permlane32_swap_b32 v{MX}, v{MN}')
    for i0 in range(0, 14, 2):
        for i in (i0, i0 + 1):
            f(f'v_fma_f32 v{EP+i}, v{A+i}, v{vRL}, -v{MX}')
            f(f'v_fma_f32 v{A+i}, -v{A+i}, v{vRL}, -v{MN}')
        for i in (i0, i0 + 1):
            f(f'v_exp_f32 v{EP+i}, v{EP+i}')
            f(f'v_exp_f32 v{A+i}, v{A+i}')

def k_epi(f, between):
    K = ACC[0]; EP = ACC[0] + 16
    f.p(GAP(2))
    phi_front(f, K)
    between(f)
    phi_exp(f, K, EP)
    S = [vT, vT + 1, vT + 2, vT + 3]
    f(f'v_add_f32 v{S[0]}, v{EP}, v{EP+1}\nv_add_f32 v{S[1]}, v{K}, v{K+1}')
    f(f'v_add_f32 v{S[2]}, v{EP+2}, v{EP+3}\nv_add_f32 v{S[3]}, v{K+2}, v{K+3}')
    for i in range(4, 14, 2):
        f(f'v_add_f32 v{S[0]}, v{S[0]}, v{EP+i}\nv_add_f32 v{S[1]}, v{S[1]}, v{K+i}')
        f(f'v_add_f32 v{S[2]}, v{S[2]}, v{EP+i+1}\nv_add_f32 v{S[3]}, v{S[3]}, v{K+i+1}')
    f(f'v_add_f32 v{S[0]}, v{S[0]}, v{S[2]}\nv_add_f32 v{S[1]}, v{S[1]}, v{S[3]}')
    f(f'v_permlane32_swap_b32 v{S[0]}, v{S[1]}')
    f(f'v_add_f32 v{S[0]}, v{S[0]}, v{S[1]}')
    f(f'v_mul_f32 v{S[0]}, v{S[0]}, v{vSD}')
    f(f'v_rcp_f32 v{S[0]}, v{S[0]}')
    f(f'v_mov_b32 v{S[1]}, v{S[0]}')
    f(f'v_permlane32_swap_b32 v{S[0]}, v{S[1]}')
    PB = vT + 6
    for sgn, src in ((0, EP), (1, K)):
        for j in range(4):
            n = 4 if j < 3 else 2
            for i in range(4 * j, 4 * j + n): f(f'v_mul_f32 v{src+i}, v{src+i}, v{S[sgn]}')
            o = PB + 8 * sgn + 2 * j
            f(f'v_cvt_pk_bf16_f32 v{o}, v{src+4*j}, v{src+4*j+1}')
            if j < 3: f(f'v_cvt_pk_bf16_f32 v{o+1}, v{src+4*j+2}, v{src+4*j+3}')
            else: f(f'v_mov_b32 v{o+1}, 0')
            f(f'ds_write_b64 v{vSW}, {vr(o, 2)} offset:{64*sgn + 16*j}', tag='scr')

vE = vT + 6
KPD = [22, 48]
KPLD = [f'buffer_load_dwordx4 {vr(KPD[k],4)}, v{18+k}, {srd(SWS)}, s{sKPR} offen sc1' for k in range(2)]

def vq_epi():
    f = Stream()
    V = ACC[1]; Q = ACC[1] + 16
    f.p(GAP(2))
    VB = vT + 14
    for k in range(8): f(f'v_cvt_pk_bf16_f32 v{VB+k}, v{V+2*k}, v{V+2*k+1}')
    f(f'v_lshrrev_b32 v{vT}, 16, v{vSD}')
    f(f'v_cndmask_b32 v{VB+6}, v{VB+6}, v{vT}, s[{sHI}:{sHI+1}]')
    f(f'v_cndmask_b32 v{VB+7}, v{VB+7}, 0, s[{sHI}:{sHI+1}]')
    for j in range(4): f(f'ds_write_b64 v{vSW}, {vr(VB+2*j, 2)} offset:{128 + 16*j}', tag='scr')
    f.p(DONE('scr'))
    phi_front(f, Q)
    f.p(SYNC('scrbar'))
    bufs = [V, vT + 6]
    D = [V + 12, vT + 18]
    def reads(kk):
        b = bufs[kk & 1]
        for rd in range(2):
            f(f'ds_read_b64_tr_b16 {vr(b+2*rd, 2)}, v{vSB} offset:{kk*7424 + rd*232}')
        for mt in range(2):
            for rd in range(2):
                f(f'ds_read_b64_tr_b16 {vr(b+4+4*mt+2*rd, 2)}, v{vSA} offset:{kk*7424 + rd*232 + mt*32}')
    reads(0); reads(1); f.p(GAP(1))
    for kk in range(4):
        b = bufs[kk & 1]
        for mt in range(2):
            f(f'v_mfma_f32_16x16x32_bf16 {vr(D[mt],4)}, {vr(b+4+4*mt,4)}, {vr(b,4)}, ' + ('0' if kk == 0 else vr(D[mt], 4)))
        if kk + 2 < 4: reads(kk + 2)
        f.p(GAP(1 if kk != 1 else 0))
    for mt in range(2):
        f(f'buffer_store_dwordx4 {vr(D[mt],4)}, v{vL16}, {srd(SWS)}, s{sKPW} offen offset:{1024*mt} {ST}')
    f.p(DONE('kp'))
    f(f'''
    v_bfe_u32 v18, v0, 3, 3
    v_and_b32 v20, 7, v0
    v_lshlrev_b32 v18, 11, v18
    v_lshl_add_u32 v18, v20, 4, v18
    v_add_u32 v19, 0x4000, v18
    ''')
    kf_addr(f, 21, 22)
    f(f'''
    s_lshr_b32 s{sROT}, s{sB}, 1
    s_and_b32 s{sROT}, s{sROT}, s{sI}
    s_and_b32 s{sROT}, s{sROT}, 1
    s_cmp_eq_u32 s{sROT}, 1
    s_cselect_b32 s{sROT}, 5, 99
    ''')
    f.p(DONE('kp2'))
    EP = V
    g = Stream(); phi_exp(g, Q, EP)
    for sgn, src in ((0, EP), (1, Q)):
        for k in range(8):
            if k < 7: g(f'v_cvt_pk_bf16_f32 v{vE+8*sgn+k}, v{src+2*k}, v{src+2*k+1}')
            else: g(f'v_mov_b32 v{vE+8*sgn+k}, 0')
    f += g
    return f

RETRY = []
def check(c, name, loads, regs, T, pre=''):
    def mx(s):
        r = list(regs)
        s(f'v_max3_u32 v{T}, v{r[0]}, v{r[1]}, v{r[2]}'); r = r[3:]
        two = len(r) > 6
        if two: s(f'v_max3_u32 v{T+1}, v{r[0]}, v{r[1]}, v{r[2]}'); r = r[3:]
        k = 0
        while len(r) >= 2:
            t = T + (k & 1 if two else 0); k += 1
            s(f'v_max3_u32 v{t}, v{t}, v{r[0]}, v{r[1]}'); r = r[2:]
        if two and r: s(f'v_max3_u32 v{T}, v{T}, v{T+1}, v{r[0]}')
        elif two: s(f'v_max_u32 v{T}, v{T}, v{T+1}')
        elif r: s(f'v_max_u32 v{T}, v{T}, v{r[0]}')
        s(f'v_cmp_eq_u32 vcc, -1, v{T}')
    mx(c)
    c(f's_cbranch_vccnz R_{name}\nB_{name}:')
    r = Stream()
    r(f'R_{name}:\ns_mov_b32 s{sTMP2}, 0x8000\nL_{name}:\ns_sleep 6\n{pre}')
    for l in loads: r(l)
    r('s_waitcnt vmcnt(0)')
    mx(r)
    r(f's_cbranch_vccz B_{name}\ns_sub_u32 s{sTMP2}, s{sTMP2}, 1\ns_cmp_lg_u32 s{sTMP2}, 0\ns_cbranch_scc1 L_{name}\ns_branch B_{name}')
    RETRY.append(finish(r))

def main_loop(typ, LOOK=4):
    cfg = CFG[typ]; bars = cfg['bars']; S = STEPS[typ]
    uses = []
    for step in range(3):
        for q in range(7):
            for t in range(4):
                for part in range(S[step]['parts']):
                    acc = ACC[step & 1] + 16 * part
                    uses.append((7 * step + q, t, part, step, acc, q == 0 and t == 0, 4 * q + t))
    N = len(uses)
    slot_of = dict(cfg['init']); slot2 = {}
    A = dict(nxt=len(slot_of), free=[], freed=0, half=None)
    xread = 0; xfreed = 0; xcredit = 0.0
    steps = [Stream(), Stream(), Stream()]
    state = {'c': steps[0], 'xhi': False, 'u': 0}
    dq = []; issued_at = {k: -99 for k in slot_of}
    def xr(k):
        c = state['c']
        blk = k >> 2
        if blk >= 4 and not state['xhi']:
            for j in range(4): c(f'v_add_u32 v{vXA+j}, 0x10000, v{vXA+j}')
            state['xhi'] = True
        c(f'ds_read_b128 {vr(XF+4*k,4)}, v{vXA+(k&3)} offset:{(blk & 3)*16384}', tag=f'X{blk}')
        if k == 27: c.p(MARK('xissued'))
    def pop_dma(c=None):
        c = state['c'] if c is None else c
        dq.sort(key=lambda e: e[0])
        slab, part = dq.pop(0)
        if isinstance(part, Stream):
            assert state['u'] >= N - 28 * S[2]['parts'] + S[2]['parts'] * (4 * int(slab - 21) + 4)
            c += part; return
        if slab >= 21:
            if slab == 21 and part == 0 and c is steps[1]: c.p(NEED('p2'))
            assert c is not steps[0]
            dma2(c, slab - 21, slot2[slab - 21], part)
        else:
            dma(c, typ, slab, slot_of[slab], part)
            if slab == 7: c.p(MARK('d6'))
        issued_at[slab] = state['u']
    def release(upto):
        while A['freed'] <= upto:
            f = A['freed']; sl = int(slot_of[f])
            held = 'holdslot' in cfg and cfg['holdslot'][0] == sl and f < 7
            if not any(int(v) == sl and m > f for m, v in slot_of.items()) and not held:
                A['free'].append(sl)
                if A['half'] is not None and int(A['half']) == sl: A['half'] = None
            A['freed'] += 1
    A['n2'] = 21
    def allocate(bar=99):
        while True:
            n = A['nxt']
            if n < 21 and (bar < cfg['w2bar'] or n < bar + cfg['ring']):
                if S[n // 7]['dparts'] == 1 and A['half'] is not None:
                    slot_of[n] = A['half']; A['half'] = None
                elif A['free']:
                    slot_of[n] = A['free'].pop(0)
                    if S[n // 7]['dparts'] == 1: A['half'] = slot_of[n] + 0.5
                else: break
                for part in range(S[n // 7]['dparts']): dq.append((n, part))
                A['nxt'] += 1
            elif A['n2'] < 30 and len(A['free']) >= 2:
                slot2[A['n2'] - 21] = (A['free'].pop(0), A['free'].pop(0))
                for k in range(4): dq.append((A['n2'], k))
                A['n2'] += 1
            else: break
        dq.sort(key=lambda e: e[0])
    def barrier(n):
        nonlocal xfreed
        c = state['c']
        k = bars.index(n); upto = bars[k + 1] if k + 1 < len(bars) else 21
        while dq and dq[0][0] < upto: pop_dma()
        assert A['nxt'] >= upto, (typ, n, A['nxt'], upto)
        if os.environ.get('VERB'): print(typ, 'barrier', n, 'u', state['u'], 'ages', [state['u'] - issued_at[m] for m in range(n, upto)], 'queue', len(dq), 'next', A['nxt'], A['n2'])
        tags = [f'W{m}' for m in range(n, upto)]
        nx = xread // 4
        for blk in range(xfreed, nx): tags.append(f'X{blk}')
        if n == 0: c.p(WAITLDS())
        if n == cfg.get('scrbar'): tags.append('scr')
        if n == cfg.get('stbar'): tags.append('st')
        if n == cfg['clrbar']: tags.append('clr')
        if n == cfg.get('abar'): tags.append('h0')
        stamp(c, f'b{n}a', 3 if PROF == 3 else 9)
        c.p(WAITTAG(*tags))
        if n == cfg['cfbar']:
            c(f'v_cmp_gt_u32 vcc, v{vCF}, v{vCF+1}\ns_cbranch_vccnz R_CF{typ}\nB_CF{typ}:')
        if n == cfg.get('habar'): poll_check(c, 0, typ)
        stamp(c, f'b{n}b', 3 if PROF == 3 else 9)
        c('s_barrier')
        stamp(c, f'b{n}', 1 if n == 0 else (2 if PROF < 4 else 9))
        for key in ('scrbar', 'stbar', 'cfbar', 'clrbar', 'phibar'):
            if n == cfg.get(key): c.p(MARK(key))
        if xfreed < 7 and nx == 7: c.p(MARK('xdone'))
        for blk in range(xfreed, nx):
            if blk not in cfg['reserved']: A['free'].append(blk)
        xfreed = nx
        release(n - 2)
        A['free'] += cfg['relbar'].get(n, [])
        if 'holdslot' in cfg and cfg['holdslot'][1] == n: A['free'].append(cfg['holdslot'][0])
        allocate(n)
        if n == cfg.get('habar'):
            for q in (0, 1): dq.extend([(21.5 + q, g) for g in hgroups(q)])
            dq.sort(key=lambda e: e[0])
    def newslab(u): return uses[u][1] == 0 and uses[u][2] == 0
    def reads(u):
        slab, t, part, step, acc, first, ks = uses[u]
        c = state['c']
        if newslab(u):
            c(f'v_add_u32 v{vC[0]}, {int(slot_of[slab]*16384)}, v{S[step]["pat"]}')
            if S[step]['parts'] == 2: c(f'v_xor_b32 v{vC[1]}, 32, v{vC[0]}')
        b = WF + 4 * (u % 6); ts = S[step]['ts']
        for rd in range(2):
            c(f'ds_read_b64_tr_b16 {vr(b+2*rd,2)}, v{vC[part]} offset:{part*8192 + t*ts + rd*ts//4}')
    def isbar(u): return u < N and newslab(u) and uses[u][0] in bars
    baru = [u for u in range(N) if isbar(u + LOOK)] + [N]
    prio_at = {}
    if env('PRIO', 1):
        prev = 0
        for e in baru:
            ln = e - prev
            if ln >= 8:
                for k in range(4): prio_at[prev + (k * ln) // 4] = 3 - k
            elif ln > 0: prio_at[prev] = 1; prio_at[prev + ln // 2] = 0
            prev = e
    barrier(0)
    for u in range(LOOK):
        reads(u)
        xr(xread); xread += 1
    lastd = -99
    def pace(u):
        if u < cfg['fast']: return 1
        nb = min(e for e in baru if e > u)
        return max(cfg['dgap'], min(cfg.get('maxgap', 4), (nb - 1 - lastd) // (len(dq) + 1)))
    extras = clears(typ); nex = len(extras)
    CFO = 128 if typ == 'F' else 0
    opregs = lambda u: [('v', r) for r in range(WF + 4 * (u % 6), WF + 4 * (u % 6) + 4)] + [('v', r) for r in range(XF + 4 * uses[u][6], XF + 4 * uses[u][6] + 4)]
    for u in range(N):
        slab, t, part, step, acc, first, ks = uses[u]
        state['c'] = steps[step]; state['u'] = u
        c = state['c']
        b = WF + 4 * (u % 6)
        bar_now = isbar(u + LOOK)
        if bar_now:
            c.p(WAITREG(opregs(u)))
            barrier(uses[u + LOOK][0])
        elif u + LOOK < N: reads(u + LOOK)
        xcredit += cfg['xrate']
        if not bar_now:
            while xcredit >= 1 and xread < 28:
                xr(xread); xread += 1; xcredit -= 1
        assert step > 0 or xread > ks
        if isbar(u + 1 + LOOK):
            n = uses[u + 1 + LOOK][0]
            if n == cfg.get('scrbar'): c.p(NEED('scr'))
            if n == cfg.get('stbar'): c.p(NEED('st'))
            if n == cfg['clrbar']: assert not extras; c.p(NEED('p2'))
            if n == cfg.get('abar'): assert not extras
            if n == cfg.get('abar') and c is steps[1]: c.p(NEED('hA'))
            c.p(NOFILL())
        if env('W2WAIT', 1) and u % 2 == 1 and u + 1 < N and xread == 28: c.p(WAITREG(opregs(u) + opregs(u + 1)))
        imf = len(c)
        c(f'v_mfma_f32_32x32x16_bf16 {vr(acc,16)}, {vr(b,4)}, {vr(XF+4*ks,4)}, ' + ('0' if first else vr(acc, 16)))
        if u in prio_at: c(f's_setprio {prio_at[u]}')
        if bar_now:
            reads(u + LOOK)
            if uses[u + LOOK][0] == cfg['clrbar']:
                c(f'buffer_atomic_add v{vCF+1}, v{vCF}, {srd(SDBG)}, 0 offen sc1')
            if typ == 'F' and uses[u + LOOK][0] == 1:
                c(f'''
                s_lshl_b32 s{sD}, s2, 9
                s_add_u32 s{sD}, s{sD}, 128
                v_lshlrev_b32 v{vCF}, 20, v0
                v_mov_b32 v{vCF+1}, 1
                buffer_atomic_add v{vCF+1}, v{vCF}, {srd(SDBG)}, s{sD} offen sc1
                ''')
            if uses[u + LOOK][0] == cfg['cfbar']: flag_setup(c)
            if uses[u + LOOK][0] == cfg.get('abar'): arrive(c, 0)
        elif not isbar(u + 1 + LOOK):
            if extras and u >= cfg['clr0'] + cfg['clrgap'] * (nex - len(extras)):
                c += extras.pop(0)
            elif dq and u - lastd >= pace(u):
                n0 = len(c); pop_dma(); lastd = u
                if env('M0EARLY', 1) and isinstance(c[n0], I) and c[n0].text.startswith('s_add_u32 m0') and isinstance(c[n0 + 1], P):
                    c.insert(imf, c.pop(n0))
        if typ == 'F' and u == env('PFW2U', 46): w2_prefetch(c)
        L2U = eval(env('L2U', '[]'))
        if typ == 'F' and u in L2U: l2_prefetch(c, L2U.index(u))
        if u == cfg['pollA']: poll(c, 0)
        if u == cfg['pollu']:
            c(f'''
            v_lshlrev_b32 v{vCF}, 6, v0
            buffer_load_dword v{vCF+1}, v{vCF}, {srd(SDBG)}, 0 offen offset:{CFO} sc1
            v_cmp_eq_u32 vcc, {2 if typ == 'H' else 0}, v0
            v_cndmask_b32 v{vCF}, 0, 1, vcc
            ''')
            if typ == 'H': c(f'v_cmp_gt_u32 vcc, 2, v0\nv_cndmask_b32 v{vCF}, v{vCF}, 64, vcc')
    RETRY.append(f'''R_CF{typ}:
    s_mov_b32 s{sTMP2}, 0x8000
L_CF{typ}:
    s_sleep 16
    v_lshlrev_b32 v{vCF+1}, 6, v0
    buffer_load_dword v{vCF+1}, v{vCF+1}, {srd(SDBG)}, 0 offen offset:{CFO} sc1
    s_waitcnt vmcnt(0)
    v_cmp_gt_u32 vcc, v{vCF}, v{vCF+1}
    s_cbranch_vccz B_CF{typ}
    s_sub_u32 s{sTMP2}, s{sTMP2}, 1
    s_cmp_lg_u32 s{sTMP2}, 0
    s_cbranch_scc1 L_CF{typ}
    s_branch B_CF{typ}''')
    state['u'] = N
    return steps, dict(dq=dq, pop=pop_dma, release=release, allocate=allocate, slot2=slot2, A=A)

def sprinkle(base, groups):
    out = Stream(); n = len(base); k = 0
    for i, ins in enumerate(base):
        while k < len(groups) and (k + 0.3) * n / max(len(groups), 1) <= i:
            out += groups[k]; k += 1
        out.append(ins)
    for g in groups[k:]: out += g
    return out

vP2 = 7; vRW = [15, 16, 17, 18]; vRR = [19, 20]; vXO = 21; XR = 22; TC = 26
def p2_lanes():
    T = TC
    su = Stream()
    su(f'''
    v_bfe_u32 v{T}, v0, 5, 1
    v_bfe_u32 v{T+1}, v0, 2, 2
    v_lshl_add_u32 v{T+1}, v{T}, 2, v{T+1}
    v_and_b32 v{T+2}, 3, v0
    v_lshlrev_b32 v{T+2}, 3, v{T+2}
    v_bfe_u32 v{T+3}, v0, 4, 1
    v_lshl_add_u32 v{T+2}, v{T+3}, 5, v{T+2}
    v_bfe_u32 v{T+3}, v0, 3, 1
    v_lshl_add_u32 v{T+2}, v{T+3}, 6, v{T+2}
    v_lshl_add_u32 v{T+1}, v{T+1}, 7, v{T+2}
    s_and_b32 s{sTMP}, s{sG2}, 1
    s_lshl_b32 s{sTMP}, s{sTMP}, 13
    v_add_u32 v{vP2}, s{sTMP}, v{T+1}
    v_and_b32 v{T+1}, 7, v0
    v_xor_b32 v{T+2}, v{T}, v{T+1}
    v_and_b32 v{T+3}, 31, v0
    v_bfe_u32 v{T}, v0, 6, 1
    v_lshl_add_u32 v{T+3}, v{T}, 5, v{T+3}
    v_lshlrev_b32 v{T+3}, 8, v{T+3}
    v_lshl_add_u32 v{vRR[1]}, v{T+2}, 4, v{T+3}
    v_lshrrev_b32 v{T}, 3, v0
    v_and_b32 v{T+2}, 7, v{T}
    v_lshlrev_b32 v{T+3}, 1, v{T+1}
    v_xor_b32 v{T+3}, v{T+3}, v{T+2}
    v_lshlrev_b32 v{T+3}, 4, v{T+3}
    v_lshl_add_u32 v{vRR[0]}, v{T}, 8, v{T+3}
    v_mul_u32_u24 v{vXO}, 896, v{T}
    v_lshl_add_u32 v{vXO}, v{T+1}, 4, v{vXO}
    ''')
    return su

def phase2(c, typ, M, tail):
    HF = XF; ACF = ACC[1]; ACS = ACC[0]
    slot2 = M['slot2']; dq = M['dq']
    def dgroups(upto):
        gs = []
        while dq and dq[0][0] - 21 <= upto:
            g = Stream(); M['pop'](g); gs.append(g)
        return gs
    c('s_setprio 0')
    stamp(c, 'main')
    def reduce(c, name):
        a, b = KPD
        check(c, name, KPLD, list(range(a, a + 4)) + list(range(b, b + 4)), TC)
        for k in range(4): c(f'v_add_f32 v{a+k}, v{a+k}, v{b+k}')
        for k in range(4): c(f'v_add_f32_dpp v{a+k}, v{a+k}, v{a+k} row_ror:8 row_mask:0xf bank_mask:0xf')
        c(f'''
        v_permlane16_swap_b32 v{a}, v{a+1}
        v_permlane16_swap_b32 v{a+2}, v{a+3}
        v_add_f32 v{a}, v{a}, v{a+1}
        v_add_f32 v{a+2}, v{a+2}, v{a+3}
        v_permlane32_swap_b32 v{a}, v{a+2}
        v_add_f32 v{a}, v{a}, v{a+2}
        v_cmp_eq_u32 vcc, s{sROT}, v20
        v_cndmask_b32 v{a}, v{a}, 1.0, vcc
        v_mov_b32 v{a+1}, v{a}
        v_permlane16_swap_b32 v{a}, v{a+1}
        v_cvt_pk_bf16_f32 v{a}, v{a}, v{a+1}
        buffer_store_dword v{a}, v21, {srd(SWS)}, s{sKFW} offen {ST}
        ''')
    KFR = hreg(6)
    KFLD = [f'buffer_load_dwordx4 {vr(KFR+4*k,4)}, v{vL16}, {srd(SWS)}, s{sKFR} offen offset:{1024*k} sc1' for k in range(4)]
    def oblock(s, name):
        AP = ACS; AM = ACS + 16; T = TC; O = KFR
        check(s, name, KFLD, list(range(KFR, KFR + 16)), TC)
        s(f'''
        v_mfma_f32_32x32x16_bf16 {vr(AP,16)}, {vr(KFR,4)}, {vr(vE,4)}, 0
        v_mfma_f32_32x32x16_bf16 {vr(AM,16)}, {vr(KFR+8,4)}, {vr(vE+8,4)}, 0
        v_mfma_f32_32x32x16_bf16 {vr(AP,16)}, {vr(KFR+4,4)}, {vr(vE+4,4)}, {vr(AP,16)}
        v_mfma_f32_32x32x16_bf16 {vr(AM,16)}, {vr(KFR+12,4)}, {vr(vE+12,4)}, {vr(AM,16)}
        v_rcp_f32 v{T}, v{AP+13}
        v_rcp_f32 v{T+1}, v{AM+13}
        v_mov_b32 v{T+2}, {hx(f2u(1e-6))}
        v_fmac_f32 v{T+2}, v{T}, v{AP+12}
        v_fmac_f32 v{T+2}, v{T+1}, v{AM+12}
        v_rcp_f32 v{T+2}, v{T+2}
        v_mul_f32 v{T}, v{T}, v{T+2}
        v_mul_f32 v{T+1}, v{T+1}, v{T+2}
        v_mov_b32 v{T+3}, v{T}
        v_mov_b32 v{T+4}, v{T+1}
        v_permlane32_swap_b32 v{T+3}, v{T}
        v_permlane32_swap_b32 v{T+4}, v{T+1}
        ''')
        for i in range(16): s(f'v_mul_f32 v{AP+i}, v{T}, v{AP+i}')
        for i in range(16): s(f'v_fmac_f32 v{AP+i}, v{T+1}, v{AM+i}')
        for k in range(8): s(f'v_cvt_pk_bf16_f32 v{vE+k}, v{AP+2*k}, v{AP+2*k+1}')
        s(f'''
        v_cndmask_b32 v{vE+6}, v{vE+6}, 0, s[{sHI}:{sHI+1}]
        v_cndmask_b32 v{vE+7}, v{vE+7}, 0, s[{sHI}:{sHI+1}]
        ''')
        s(f'''
        buffer_store_dwordx4 {vr(vE,4)}, v{vL16}, {srd(SWS)}, s{sO} offen {ST}
        buffer_store_dwordx4 {vr(vE+4,4)}, v{vL16}, {srd(SWS)}, s{sO} offen offset:1024 {ST}
        ''', tag='o')
    def notile():
        c(f's_cmp_eq_u32 s{sCT}, 7\ns_cbranch_scc1 KM_NOTILE')
        s = Stream(); s('KM_NOTILE:\ns_nop 7\ns_nop 7'); s += tail
        for l in KPLD: s(l)
        reduce(s, 'KP2')
        s('s_waitcnt vmcnt(0)\ns_barrier'); arrive(s, 1)
        s('s_sleep 8')
        for l in KFLD: s(l)
        oblock(s, 'KF2')
        s('s_waitcnt vmcnt(0)\ns_barrier'); arrive(s, 3)
        s('s_endpgm')
        RETRY.append(finish(s))
    covered = set()
    uses = [(r, cb) for r in range(32) for cb in range(2)] + [(r, cb) for cb in range(2) for r in range(32, 36)]
    def reads(u):
        r, cb = uses[u]; q = r // 4
        if u % 8 == 0:
            c(f's_mul_i32 s{sTMP}, s{sG}, {(slot2[q][1]-slot2[q][0])*16384}\ns_add_u32 s{sTMP}, s{sTMP}, {slot2[q][0]*16384}')
            c(f'v_add_u32 v{vC[0]}, s{sTMP}, v{vP2}\nv_xor_b32 v{vC[1]}, 64, v{vC[0]}')
        b = WF + 4 * (u % 6)
        for rd in range(2):
            row = 16 * (r % 4) + 8 * rd if r < 28 else 28 * ((r % 4) >> 1) + 16 * (r & 1) + 8 * rd
            c(f'ds_read_b64_tr_b16 {vr(b+2*rd,2)}, v{vC[cb]} offset:{row*128}')
    def part_addr(slots):
        c(f'''
        s_cmp_lt_u32 s{sW}, 4
        s_cselect_b32 s{sTMP}, {slots[0]}, {slots[2]}
        s_cselect_b32 s{sTMP2}, {slots[1]}, {slots[3]}
        s_bitcmp1_b32 s{sW}, 1
        s_cselect_b32 s{sTMP}, s{sTMP2}, s{sTMP}
        s_lshl_b32 s{sTMP}, s{sTMP}, 14
        v_add_u32 v{vRW[0]}, s{sTMP}, v{vRR[1]}
        ''')
        for j in range(1, 4): c(f'v_xor_b32 v{vRW[j]}, {32*j}, v{vRW[0]}')
    def pwrite(acc, c=c, cbs=(0, 1)):
        for cb in cbs:
            for j in range(4):
                c(f'ds_write_b128 v{vRW[j]}, {vr(acc+16*cb+4*j,4)} offset:{cb*128}', tag='pw')
    def pread(dst, slots):
        for p in range(4):
            c(f'v_add_u32 v{TC}, {slots[p]*16384}, v{vRR[0]}\nv_xor_b32 v{TC+1}, 16, v{TC}')
            for k in range(2): c(f'ds_read_b128 {vr(dst+8*p+4*k,4)}, v{TC+k}')
    def psum(dst):
        for i in range(8): c(f'v_add_f32 v{dst+i}, v{dst+i}, v{dst+8+i}')
        for i in range(8): c(f'v_add_f32 v{dst+16+i}, v{dst+16+i}, v{dst+24+i}')
        for i in range(8): c(f'v_add_f32 v{dst+i}, v{dst+i}, v{dst+16+i}')
    FSR = hreg(2); SS = hreg(4)
    st = dict(nread=0, done=-1, freed=-1)
    def ahead(u):
        while st['nread'] < 72 and st['nread'] <= u + 4 and st['nread'] // 8 in covered: reads(st['nread']); st['nread'] += 1
    def compute(q):
        for u in range(8 * q, 8 * q + 8):
            r, cb = uses[u]
            ahead(u); assert st['nread'] > u
            acc = (ACF if r < 28 else ACS) + 16 * cb
            first = r == 0 or r == 28
            c(f'v_mfma_f32_32x32x16_bf16 {vr(acc,16)}, {vr(WF+4*(u%6),4)}, {vr(hreg(q)+4*(r%4),4)}, ' + ('0' if first else vr(acc, 16)))
        st['done'] = q
    def units(lst):
        g = []
        for o in lst:
            k, a = o[0], o[1:]
            if k == 'W': g += dgroups(int(a)); assert int(a) in slot2
            elif k == 'h':
                assert int(a) < 7 or st['done'] >= int(a) - 7
                g += hgroups(int(a))
            elif o == 'K': g += [Stream()(l) for l in KFLD]
            elif o == 'k': g += [Stream()(l) for l in KPLD]
            elif k == 'P': t = Stream(); poll(t, int(a)); g.append(t)
            elif k == 'x': g.append(Stream()(f'buffer_load_dwordx4 {vr(XR,4)}, v{vXO}, {srd(SXO)}, 0 offen'))
            else: raise ValueError(o)
        return g
    def silu(f):
        for i in range(8): f(f'v_add_f32 v{FSR+i}, v{FSR+i}, v{FSR+8+i}')
        for i in range(8): f(f'v_add_f32 v{FSR+16+i}, v{FSR+16+i}, v{FSR+24+i}')
        for i in range(8): f(f'v_add_f32 v{FSR+i}, v{FSR+i}, v{FSR+16+i}')
        for i in range(8): f(f'v_mul_f32 v{FSR+8+i}, {hx(f2u(-LOG2E))}, v{FSR+i}')
        for i in range(8): f(f'v_exp_f32 v{FSR+8+i}, v{FSR+8+i}')
        for i in range(8): f(f'v_add_f32 v{FSR+8+i}, 1.0, v{FSR+8+i}')
        for i in range(8): f(f'v_rcp_f32 v{FSR+8+i}, v{FSR+8+i}')
        for i in range(8): f(f'v_mul_f32 v{FSR+i}, v{FSR+i}, v{FSR+8+i}')
        for kk in range(4):
            f(f'v_lshlrev_b32 v{FSR+8+2*kk}, 16, v{XR+kk}\nv_and_b32 v{FSR+9+2*kk}, 0xffff0000, v{XR+kk}')
    PS = []
    SCRIPT = {
        'F': 'Th1 B0,1 A1 G C0:W3 C1:W4 Th2 B A2 P1 W5 W6 K1 B2,3,4 h2 h3 C2:h4,P2 B C3:W7 K2 B5,6 C4:P3,h5,h6 K3 B C5:h7,W8,x B7 C6:h8 E7 B8 E8',
        'H': 'B N G:P0,W1,k K0 B h0 Z U h1 Th2 B0,1 A1 C0:W2,K C1:W3 O:W4 B P1 W5 To B A3 W6 K1 B2,3,4 h2 h3 C2:h4,P2 B C3:W7 K2 B5,6 C4:P3,h5,h6 K3 B C5:h7,W8,x B7 C6:h8 E7 B8 E8',
    }
    nb = 0
    for op in os.environ.get('SCRIPT' + typ, SCRIPT[typ]).split():
        op, _, un = op.partition(':')
        k, a = op[0], op[1:]
        gs = units(un.split(',')) if un else None
        n0 = len(c)
        if k == 'C': compute(int(a))
        elif k in 'WhPxk' or op == 'K':
            for g in units([op]): c += g
        elif k == 'B':
            cov = [int(x) for x in a.split(',')] if a else []
            stamp(c, f'p{nb}a', 4)
            c.p(WAITTAG('pw', *[f'V{m}' for m in cov]))
            c('s_barrier'); stamp(c, f'p{nb}', 2 if PROF != 3 else 9); nb += 1
            covered |= set(cov)
            if nb == 1:
                M['release'](20); M['A']['free'] += [x for x in CFG[typ]['reserved'] if typ == 'H']
            while st['freed'] < st['done']:
                st['freed'] += 1; M['A']['free'] += list(slot2[st['freed']])
            M['allocate']()
            if nb == 1 and os.environ.get('VERB'): print(typ, 'phase2 slots', slot2, 'queue', [e[0] for e in dq])
            ahead(8 * (st['done'] + 1) - 1)
        elif k == 'K': poll_check(c, int(a), typ)
        elif k == 'T': c.p(WAITTAG(a))
        elif k == 'Y': check(c, f'H{a}{typ}', hloads(int(a)), list(range(hreg(int(a)), hreg(int(a)) + 16)), TC, pre=hpre(int(a)))
        elif k == 'N': notile()
        elif k == 'G': c += tail
        elif k == 'Z': reduce(c, 'KP')
        elif k == 'U': c += p2_lanes()
        elif k == 'D':
            compute(0); compute(1)
            m = Stream(c[n0:]); del c[n0:]
            c += interleave(m, tail, env('BD', 8.0))
        elif k == 'A': arrive(c, int(a))
        elif k == 'O':
            oblock(c, 'KF')
            n0 = next(i for i in range(n0, len(c)) if isinstance(c[i], I) and c[i].kind == 'label') + 1
        elif k == 'X':
            assert st['freed'] >= 5
            PS = list(slot2[4]) + list(slot2[5])
            part_addr(PS); n0 = len(c); pwrite(ACF)
        elif k == 'S':
            pread(FSR, PS)
            n0 = len(c); compute(7); compute(8)
            f = Stream(); silu(f)
            m = Stream(c[n0:]); del c[n0:]
            c += interleave(m, f, 6.5)
        elif op == 'E7':
            assert st['freed'] >= 5
            PS = list(slot2[4]) + list(slot2[5])
            part_addr(PS)
            n0 = len(c); compute(7)
            f = Stream([GAP(1)]); pwrite(ACF, f)
            m = Stream(c[n0:]); del c[n0:]
            c += interleave(m, f, 0.75)
        elif op == 'E8':
            assert st['freed'] >= 7
            pread(FSR, PS)
            PS = list(slot2[6]) + list(slot2[7])
            part_addr(PS)
            n0 = len(c); compute(8)
            m = Stream(c[n0:]); del c[n0:]
            k5 = [i for i, x in enumerate(m) if isinstance(x, I) and x.kind == 'mfma'][5]
            m.insert(k5, MARK('cb0'))
            g = Stream(); silu(g)
            w = Stream(); pwrite(ACS, w, (0,))
            cutn = int(len(g) * 0.5)
            rest = Stream()
            c += interleave(m, Stream([GAP(1)] + g[:cutn] + [SYNC('cb0')] + w + g[cutn:]), 8, rest)
            nw = max([i + 1 for i, x in enumerate(rest) if x.kind == 'ds'], default=0)
            c += rest[:nw + 10]
            pwrite(ACS, c, (1,))
            c += rest[nw + 10:]
            st['new'] = True
        else: raise ValueError(op)
        if gs:
            m = Stream(c[n0:]); del c[n0:]
            if k == 'C':
                per = len(gs) / 8.0; cnt = 0; done = 0
                for ins in m:
                    c.append(ins)
                    if isinstance(ins, I) and ins.kind == 'mfma':
                        cnt += 1
                        while done < len(gs) and done + 0.5 <= cnt * per + (0.5 if per < 1 else 0): c += gs[done]; done += 1
                for g in gs[done:]: c += g
            else: c += sprinkle(m, gs)
        if k in 'COGZDE': stamp(c, op, 4 if k in 'CE' else 1)
    stamp(c, 'mm')
    if 'new' not in st:
        c('s_barrier')
        pwrite(ACS)
    c.p(WAITTAG('pw')); c('s_barrier')
    pread(SS, PS)
    psum(SS)
    for i in range(8): c(f'v_fmac_f32 v{FSR+8+i}, v{SS+i}, v{FSR+i}')
    for k in range(4): c(f'v_cvt_pk_bf16_f32 v{XR+k}, v{FSR+8+2*k}, v{FSR+9+2*k}')
    c(f'buffer_store_dwordx4 {vr(XR,4)}, v{vXO}, {srd(SOUT)}, 0 offen ' + env('OUTF', 'sc0 sc1'))
    stamp(c, 'end')

def strip(c): return Stream([x for x in c if not (isinstance(x, P) and x.kind == 'slotend')])

def gen():
    text = []
    top = Stream()
    top(f'''
    s_cmp_ge_u32 s2, 256
    s_cbranch_scc1 KM_EXIT
    s_load_dwordx8 s[4:11], s[0:1], 0
    s_load_dwordx8 s[12:19], s[0:1], 32
    s_load_dwordx4 s[20:23], s[0:1], 64
    s_load_dwordx2 s[24:25], s[0:1], 80
    {('s_memrealtime s[66:67]' if env('RT', 0) else 's_memtime s[66:67]') if PROF else ''}
    {'s_memrealtime s[92:93]' if PROF else ''}
    ''')
    top_common(top)
    top('s_bitcmp1_b32 s2, 5\ns_cbranch_scc1 KM_H')
    names = {}
    fs0 = (FS['n'], list(FS['names']))
    for typ in 'FH':
        FS['n'] = fs0[0]; FS['names'] = list(fs0[1])
        c = Stream(top)
        prologue(c, typ)
        steps, M = main_loop(typ)
        bud = CFG[typ]['bud']
        f0 = Stream()
        if typ == 'F':
            f0.p(SYNC('d6')); p2_setup(f0, typ)
            f0.p(SYNC('xdone')); stat_put(f0); f0.p(DONE('st'))
            f1 = Stream(); f1.p(DONE('st')); f1.p(DONE('p2')); stat_get(f1, typ); f1 += gelu_du(ACC[0], 0); f1.p(DONE('hA'))
            c += interleave(steps[0], f0, bud[0])
            c += interleave(steps[1], f1, bud[1])
            c += interleave(steps[2], Stream([GAP(2)]) + gelu_du(ACC[1], 1) + p2_lanes(), bud[2])
            tail = gelu_du(ACC[0], 2)
        else:
            f0.p(SYNC('phibar')); phi_load(f0); f0.p(SYNC('d6')); p2_setup(f0, typ); f0.p(SYNC('xissued')); stat_get(f0, typ)
            f1 = Stream(); f1.p(DONE('p2')); k_epi(f1, lambda f: f.p(GAP(2)))
            c += interleave(steps[0], f0, bud[0])
            c += interleave(steps[1], f1, bud[1])
            rest = Stream()
            c += interleave(steps[2] + [NEED('kp2')], vq_epi(), bud[2], rest)
            tail = Stream(gelu_half(ACC[0], 2, WF) + rest)
            if os.environ.get('VERB'): print('H leftover', len(rest))
        phase2(c, typ, M, tail)
        prof_out(c, typ)
        c('s_endpgm')
        full = finish(strip(c)).split('\n')
        idx = next(k for k, l in enumerate(full) if 's_cbranch_scc1 KM_H' in l)
        if typ == 'F': text += full
        else: text += ['KM_H:'] + full[idx + 1:]
        text += RETRY; RETRY.clear()
        names[typ] = list(FS['names'])
    text += ['KM_EXIT:', '    s_endpgm']
    return '\n'.join(text).replace('KM_SETUP:', setup_block('H') + '\n' + setup_block('F')), names

if __name__ == '__main__':
    import sys, json
    NAME = KN[:-7]
    hdr = open(f'cdna_kernels/{NAME}.s.ref').read().split('; Override launch')[0]
    body, names = gen()
    s = hdr + '; @launch grid=(256,1,1) block=(512,1,1) lds=163840\n'
    if PROF: s += '; STAMPS ' + json.dumps(names) + '\n'
    s += '.amdgcn_target "amdgcn-amd-amdhsa--gfx950"\n.text\n' + kernel(KN, body)
    out = sys.argv[1] if len(sys.argv) > 1 else f'cdna_kernels/{NAME}.s'
    open(out, 'w').write(s)
    print('wrote', out, len(s.split('\n')), 'lines')
```
